```python
import torch

def _softmax(x, axis=-1):
    return torch.softmax(x, dim=axis)
def _gelu(x):
    return torch.nn.functional.gelu(x, approximate="tanh")
def _silu(x):
    return torch.nn.functional.silu(x)
def _sigmoid(x):
    return torch.sigmoid(x)
def _layernorm(x, axis=-1, eps=1e-5):
    m = x.mean(dim=axis, keepdim=True)
    v = x.var(dim=axis, keepdim=True, unbiased=False)
    return (x - m) / torch.sqrt(v + eps)
def _scatter_add(tgt, idx, src, axis=0):
    return tgt.clone().index_add_(axis, idx, src)
def _segment_sum(src, seg, n):
    out = torch.zeros((n,) + src.shape[1:], dtype=src.dtype)
    return out.index_add_(0, seg, src)
def _pad(x, pw):
    flat = tuple(v for pair in reversed(pw) for v in pair)
    return torch.nn.functional.pad(x, flat)

kernel_name = 'concat_heads__gqa_block_cached__gqa_block_cached__decode'

def setup_inputs():

    _w = (lambda a: (lambda t: t.to(torch.bfloat16) if t.is_floating_point() else t)(torch.as_tensor(a)))
    def _A_setup():
        B, Sq, D = 2, 1, 576
        Hq, Hkv, Sk, Dh = 32, 16, 4096, 128
        assert Hq % Hkv == 0, (Hq, Hkv)
        return {
            "x": _w((lambda *s: torch.randn(*s, dtype=torch.bfloat16) * 0.8)(B, Sq, D)),
            "k_cache": _w((lambda *s: torch.randn(*s, dtype=torch.bfloat16) * 0.8)(B, Hkv, Sk, Dh)),
            "v_cache": _w((lambda *s: torch.randn(*s, dtype=torch.bfloat16) * 0.05)(B, Hkv, Sk, Dh)),
            "wq": _w((lambda *s: torch.randn(*s, dtype=torch.bfloat16) * 0.8)(D, Hq * Dh) * (D ** -0.5)),
            "wo": _w((lambda *s: torch.randn(*s, dtype=torch.bfloat16) * 0.05)(Hq * Dh, D) * ((Hq * Dh) ** -0.5)),
        }
    _A_in = _A_setup()

    def _B_setup():
        B, Sq, D = 2, 1, 576
        Hq, Hkv, Sk, Dh = 32, 16, 4096, 128
        assert Hq % Hkv == 0, (Hq, Hkv)
        return {
            "x": _w((lambda *s: torch.randn(*s, dtype=torch.bfloat16) * 0.8)(B, Sq, D)),
            "k_cache": _w((lambda *s: torch.randn(*s, dtype=torch.bfloat16) * 0.8)(B, Hkv, Sk, Dh)),
            "v_cache": _w((lambda *s: torch.randn(*s, dtype=torch.bfloat16) * 0.05)(B, Hkv, Sk, Dh)),
            "wq": _w((lambda *s: torch.randn(*s, dtype=torch.bfloat16) * 0.8)(D, Hq * Dh) * (D ** -0.5)),
            "wo": _w((lambda *s: torch.randn(*s, dtype=torch.bfloat16) * 0.05)(Hq * Dh, D) * ((Hq * Dh) ** -0.5)),
        }
    _B_in = _B_setup()

    return {
        "A_x": _A_in["x"],
        "A_k_cache": _A_in["k_cache"],
        "A_v_cache": _A_in["v_cache"],
        "A_wq": _A_in["wq"],
        "A_wo": _A_in["wo"],
        "B_x": _B_in["x"],
        "B_k_cache": _B_in["k_cache"],
        "B_v_cache": _B_in["v_cache"],
        "B_wq": _B_in["wq"],
        "B_wo": _B_in["wo"],
    }

def reference(A_x, A_k_cache, A_v_cache, A_wq, A_wo, B_x, B_k_cache, B_v_cache, B_wq, B_wo):
    def _A_ref(x, k_cache, v_cache, wq, wo):
        B, Sq, D = x.shape
        Hq, Dh = 32, 128
        Hkv = k_cache.shape[1]
        rep = Hq // Hkv
        q = (lambda x, *d: x.permute(*d))((x @ wq).reshape(B, Sq, Hq, Dh), 0, 2, 1, 3)
        k = (lambda x, n, axis: torch.repeat_interleave(x, n, dim=axis))(k_cache, rep, axis=1)
        v = (lambda x, n, axis: torch.repeat_interleave(x, n, dim=axis))(v_cache, rep, axis=1)
        scores = torch.einsum("bhqd,bhkd->bhqk", q, k) * (Dh ** -0.5)
        p = _softmax(scores, axis=-1)
        o = torch.einsum("bhqk,bhkd->bhqd", p, v)
        return (lambda x, *d: x.permute(*d))(o, 0, 2, 1, 3).reshape(B, Sq, Hq * Dh) @ wo

    def _B_ref(x, k_cache, v_cache, wq, wo):
        B, Sq, D = x.shape
        Hq, Dh = 32, 128
        Hkv = k_cache.shape[1]
        rep = Hq // Hkv
        q = (lambda x, *d: x.permute(*d))((x @ wq).reshape(B, Sq, Hq, Dh), 0, 2, 1, 3)
        k = (lambda x, n, axis: torch.repeat_interleave(x, n, dim=axis))(k_cache, rep, axis=1)
        v = (lambda x, n, axis: torch.repeat_interleave(x, n, dim=axis))(v_cache, rep, axis=1)
        scores = torch.einsum("bhqd,bhkd->bhqk", q, k) * (Dh ** -0.5)
        p = _softmax(scores, axis=-1)
        o = torch.einsum("bhqk,bhkd->bhqd", p, v)
        return (lambda x, *d: x.permute(*d))(o, 0, 2, 1, 3).reshape(B, Sq, Hq * Dh) @ wo

    a = _A_ref(A_x, A_k_cache, A_v_cache, A_wq, A_wo)
    b = _B_ref(B_x, B_k_cache, B_v_cache, B_wq, B_wo)
    return torch.concatenate([a, b], axis=-1)
```

```python
import sys, math
NAME = "concat_heads__gqa_block_cached__gqa_block_cached__decode"

WS_E    = 0x0
WS_FLAG = 0x1000
WS_Q    = 0x10000
WS_O    = 0x90000
WS_R    = 0xE0000
WS_SIZE = 0x200000
O_STR = 1152
R_STR = 640
L_Q = 0x000; L_QF = 0x200; L_ST = 0x240; L_ACC = 0x400; L_OUT = 0x2400; L_SIZE = 0x3400

TAGK = 0x9E3779B9
TAGX = 0x5BD1E995
SPIN = 1 << 20

def gen(stamps=False, NVP=20, opts=None):
    opts = opts or {}
    L = []
    def A(s): L.append("    " + s)
    def LBL(s): L.append(s + ":")
    def C(s): L.append("    ; " + s)
    nst = [0]
    def stamp(i, late=False):
        if late and opts.get('commonly'): return
        if stamps:
            A(f"s_memrealtime s[{64+2*i}:{65+2*i}]")
    L.append(f"; @launch grid=(256,1,1) block=(512,1,1) lds={L_SIZE}")
    L.append('.amdgcn_target "amdgcn-amd-amdhsa--gfx950"')
    L.append(".text"); L.append(f".globl {NAME}_kernel"); L.append(".p2align 8"); L.append(f".type {NAME}_kernel,@function")
    L.append(f"{NAME}_kernel:")
    sK, sV, sWO, sWQ, sX, sWS, sOUT = 8, 12, 16, 20, 24, 28, 32
    sW, sP, sH, sJ, sG, sSL, sT, sE = 36, 37, 38, 39, 40, 41, 42, 43
    sTAG = 44
    sC = 46; sCNT = 47; sT2 = 48; sT3 = 49; sSELLO = 50; sSELHI = 51; sEX = 52
    sM = 54
    def srd(b): return f"s[{b}:{b+3}]"
    vKO, vVO = 1, 2
    vT0, vT1, vT2, vT3 = 3, 4, 5, 6
    vL = 7
    vQ = 8
    vMK = 12
    vA0 = 16
    vA1 = 20
    vACC = 24
    vM, vLS = 28, 29
    vT4, vT5 = 30, 31
    vS = 32
    vVP = 48
    vKS = 128
    assert vVP + 4 * NVP <= vKS
    def kslot(n): return vKS + 4 * n
    def vslot(n): return vVP + 4 * n if n < NVP else kslot(n - NVP)
    NVR = 32 - NVP
    def wslot(n): return kslot(NVR + n)
    assert NVR + 16 <= 32 and NVR % 4 == 0
    def r4(b): return f"v[{b}:{b+3}]"
    def r2(b): return f"v[{b}:{b+1}]"

    stamp(0)
    A("s_cmp_ge_u32 s2, 256")
    A("s_cbranch_scc1 L_end")
    A(f"s_lshr_b32 s{sP}, s2, 7")
    A(f"s_mul_i32 s3, s{sP}, 40")
    A(f"s_load_dwordx2 s[{sK}:{sK+1}], s[0:1], s3 offset:8")
    A(f"s_load_dwordx2 s[{sV}:{sV+1}], s[0:1], s3 offset:16")
    A(f"s_load_dwordx2 s[{sWQ}:{sWQ+1}], s[0:1], s3 offset:24")
    A(f"s_load_dwordx2 s[{sX}:{sX+1}], s[0:1], s3 offset:0")
    A(f"s_load_dwordx2 s[{sWS}:{sWS+1}], s[0:1], 96")
    A(f"s_load_dwordx2 s[{sWO}:{sWO+1}], s[0:1], s3 offset:32")
    A(f"s_load_dwordx2 s[{sOUT}:{sOUT+1}], s[0:1], 80")
    A(f"v_lshrrev_b32 v{vT0}, 6, v0")
    A(f"v_and_b32 v{vL}, 63, v0")
    A(f"v_readfirstlane_b32 s{sW}, v{vT0}")
    A(f"s_and_b32 s{sH}, s2, 7")
    A(f"s_bfe_u32 s3, s2, 0x10006")
    A(f"s_lshl_b32 s3, s3, 3")
    A(f"s_add_u32 s{sH}, s{sH}, s3")
    A(f"s_bfe_u32 s{sJ}, s2, 0x30003")
    A(f"s_lshl_b32 s{sG}, s{sP}, 4")
    A(f"s_add_u32 s{sG}, s{sG}, s{sH}")
    A(f"s_lshr_b32 s3, s{sJ}, 2")
    A(f"s_lshl_b32 s{sSL}, s3, 24")
    A(f"s_lshl_b32 s3, s{sH}, 20")
    A(f"s_add_u32 s{sSL}, s{sSL}, s3")
    A(f"s_and_b32 s3, s{sJ}, 3")
    A(f"s_lshl_b32 s3, s3, 18")
    A(f"s_add_u32 s{sSL}, s{sSL}, s3")
    A(f"s_and_b32 s3, s{sW}, 3")
    A(f"s_lshl_b32 s3, s3, 12")
    A(f"s_add_u32 s{sSL}, s{sSL}, s3")
    A(f"s_lshr_b32 s3, s{sW}, 2")
    A(f"s_lshl_b32 s3, s3, 17")
    A(f"s_add_u32 s{sSL}, s{sSL}, s3")
    for b, sz in ((sK, 0x2000000), (sV, 0x2000000), (sWQ, 576*8192), (sX, 2304), (sWS, WS_SIZE), (sOUT, 4608)):
        A(f"s_mov_b32 s{b+2}, {sz:#x}"); A(f"s_mov_b32 s{b+3}, 0x20000")
    A(f"s_cmp_ge_u32 s{sW}, 4")
    A(f"s_cselect_b32 s{sWO+2}, {0 if opts.get('nowo') else 4096*1152:#x}, 0")
    A(f"s_mov_b32 s{sWO+3}, 0x20000")
    A(f"v_lshlrev_b32 v{vVO}, 4, v{vL}")
    A(f"v_and_b32 v{vT0}, 3, v{vL}")
    A(f"v_lshlrev_b32 v{vT0}, 4, v{vT0}")
    A(f"v_bfe_u32 v{vT1}, v{vL}, 2, 2")
    A(f"v_lshlrev_b32 v{vT1}, 8, v{vT1}")
    A(f"v_lshrrev_b32 v{vT2}, 4, v{vL}")
    A(f"v_lshlrev_b32 v{vKO}, 6, v{vT2}")
    A(f"v_add3_u32 v{vKO}, v{vKO}, v{vT0}, v{vT1}")
    A(f"v_and_b32 v{vT0}, 1, v{vL}")
    A(f"v_lshlrev_b32 v{vT0}, 4, v{vT0}")
    A(f"v_mov_b32 v{vT1}, 0xffff")
    A(f"v_lshlrev_b32 v{vT0}, v{vT0}, v{vT1}")
    A(f"v_bfe_u32 v{vT1}, v{vL}, 1, 2")
    for w in range(4): A(f"v_cmp_eq_u32 s[{sM+2*w}:{sM+2*w+1}], {w}, v{vT1}")
    A("s_nop 1")
    for w in range(4): A(f"v_cndmask_b32 v{vMK+w}, 0, v{vT0}, s[{sM+2*w}:{sM+2*w+1}]")
    A(f"s_mov_b32 s{sC}, {f2u(math.log2(math.e)/math.sqrt(128.0)):#x}")
    for i in range(4): A(f"v_mov_b32 v{vA0+i}, 0")
    A("s_mov_b64 exec, 1")
    A(f"ds_write_b128 v{vA0}, {r4(vA0)} offset:{L_QF}")
    A("s_mov_b64 exec, -1")
    A("s_waitcnt lgkmcnt(0)")
    stamp(1)
    A(f"s_lshl_b32 s3, s{sP}, 8")
    A(f"s_load_dword s{sE}, s[{sWS}:{sWS+1}], s3")
    if opts.get('nocomm'): A("s_branch L_stream")
    A(f"s_cmp_ge_u32 s{sW}, 2")
    A("s_cbranch_scc1 L_stream0")

    C("---- q projection: wave 6+c handles head c of the pair, rows 72j..72j+71 ----")
    if opts.get('prio'): A("s_setprio 3")
    sCH = sT3
    A(f"s_mov_b32 s{sCH}, s{sW}")
    vX = vVP
    vWQO = vT4
    A(f"v_bfe_u32 v{vT0}, v{vL}, 3, 1")
    A(f"v_mul_u32_u24 v{vT0}, 1152, v{vT0}")
    A(f"v_mad_u32_u24 v{vT0}, v{vT2}, 36, v{vT0}")
    A(f"s_mul_i32 s{sT}, s{sJ}, 144")
    A(f"buffer_load_dwordx4 {r4(vX)}, v{vT0}, {srd(sX)}, s{sT} offen")
    A(f"buffer_load_dwordx4 {r4(vX+4)}, v{vT0}, {srd(sX)}, s{sT} offen offset:16")
    A(f"buffer_load_dword v{vX+8}, v{vT0}, {srd(sX)}, s{sT} offen offset:32")
    A(f"v_and_b32 v{vT1}, 15, v{vL}")
    A(f"v_lshlrev_b32 v{vT1}, 4, v{vT1}")
    A(f"v_mul_u32_u24 v{vWQO}, {18*8192}, v{vT2}")
    A(f"v_add_u32 v{vWQO}, v{vWQO}, v{vT1}")
    A(f"s_mul_i32 s{sT}, s{sJ}, {72*8192}")
    A(f"s_lshl_b32 s3, s{sH}, 9")
    A(f"s_add_u32 s{sT}, s{sT}, s3")
    A(f"s_lshl_b32 s3, s{sCH}, 8")
    A(f"s_add_u32 s{sT}, s{sT}, s3")
    for n in range(18):
        A(f"buffer_load_dwordx4 {r4(kslot(n))}, v{vWQO}, {srd(sWQ)}, s{sT} offen {opts.get('wqflags','nt')}")
        if n < 17: A(f"s_add_u32 s{sT}, s{sT}, 8192")
        if n == opts.get('cbar', 17): A("s_barrier")
    opts.get("commonly") and stamp(8)
    vSENT = vS
    for i in range(4): A(f"v_mov_b32 v{vSENT+i}, -1")
    A(f"s_lshl_b32 s{sT2}, s{sG}, 3")
    A(f"s_add_u32 s{sT2}, s{sT2}, s{sJ}")
    A(f"s_cmp_eq_u32 s{sCH}, 0")
    A("s_cbranch_scc0 L_clrR")
    A(f"s_mul_i32 s{sT}, s{sT2}, {O_STR}")
    A(f"s_add_u32 s{sT}, s{sT}, {WS_O:#x}")
    A(f"buffer_store_dwordx4 {r4(vSENT)}, v{vVO}, {srd(sWS)}, s{sT} offen sc1")
    A(f"s_mov_b64 exec, 1")
    A(f"buffer_store_dwordx4 {r4(vSENT)}, v{vVO}, {srd(sWS)}, s{sT} offen offset:1024 sc1")
    A(f"s_branch L_clrdone")
    LBL("L_clrR")
    A(f"s_lshl_b32 s{sT}, s{sP}, 3")
    A(f"s_add_u32 s{sT}, s{sT}, s{sJ}")
    A(f"s_lshl_b32 s{sT}, s{sT}, 4")
    A(f"s_add_u32 s{sT}, s{sT}, s{sH}")
    A(f"s_mul_i32 s{sT}, s{sT}, {R_STR}")
    A(f"s_add_u32 s{sT}, s{sT}, {WS_R:#x}")
    A("s_mov_b32 exec_hi, 0xf")
    A(f"buffer_store_dwordx4 {r4(vSENT)}, v{vVO}, {srd(sWS)}, s{sT} offen sc1")
    A(f"s_mov_b64 exec, 1")
    A(f"buffer_store_dwordx4 {r4(vSENT)}, v{vVO}, {srd(sWS)}, s{sT} offen sc1")
    LBL("L_clrdone")
    A("s_mov_b64 exec, -1")
    A(f"s_mov_b32 s{sSELLO}, 0x01000100")
    A(f"s_mov_b32 s{sSELHI}, 0x03020302")
    Ab = [vA0, vA1]
    def xop(n):
        a = Ab[n & 1]
        A(f"v_perm_b32 v{vT0}, v{vX + (n>>1)}, v{vX + (n>>1)}, s{sSELHI if n & 1 else sSELLO}")
        for w in range(4): A(f"v_and_b32 v{a+w}, v{vT0}, v{vMK+w}")
    A("s_waitcnt vmcnt(20)")
    opts.get("commonly") and stamp(9)
    xop(0)
    for n in range(18):
        if n + 1 < 18: xop(n + 1)
        else: A("s_nop 1")
        A(f"s_waitcnt vmcnt({17 - n + 2})")
        if n == 0: opts.get("commonly") and stamp(10)
        if n == 9: opts.get("commonly") and stamp(11)
        A(f"v_mfma_f32_16x16x32_bf16 {r4(vACC)}, {r4(Ab[n&1])}, {r4(kslot(n))}, {'0' if n == 0 else r4(vACC)}")
    A(f"v_lshrrev_b32 v{vT0}, 5, v{vL}")
    A(f"v_lshlrev_b32 v{vT0}, 9, v{vT0}")
    A(f"v_and_b32 v{vT1}, 15, v{vL}")
    A(f"v_lshlrev_b32 v{vT1}, 5, v{vT1}")
    A(f"v_bfe_u32 v{vT3}, v{vL}, 4, 1")
    A(f"v_lshlrev_b32 v{vT3}, 4, v{vT3}")
    A(f"v_add3_u32 v{vT0}, v{vT0}, v{vT1}, v{vT3}")
    A(f"s_lshl_b32 s{sT}, s{sT2}, 1")
    A(f"s_add_u32 s{sT}, s{sT}, s{sCH}")
    A(f"s_lshl_b32 s{sT}, s{sT}, 10")
    A(f"s_add_u32 s{sT}, s{sT}, {WS_Q:#x}")
    A(f"buffer_store_dwordx4 {r4(vACC)}, v{vT0}, {srd(sWS)}, s{sT} offen sc1")
    stamp(2)
    if opts.get('wqonly'): A("s_branch L_stream")
    A("s_waitcnt lgkmcnt(0)")
    A(f"s_add_u32 s{sTAG}, s{sE}, {TAGK:#x}")
    A(f"s_xor_b32 s{sTAG+1}, s{sTAG}, {TAGX:#x}")
    A(f"v_mov_b32 v{vT4}, s{sTAG}")
    A(f"v_mov_b32 v{vT5}, s{sTAG+1}")
    A(f"s_lshl_b32 s{sT}, s{sG}, 1")
    A(f"s_add_u32 s{sT}, s{sT}, s{sCH}")
    A(f"s_lshl_b32 s{sT}, s{sT}, 7")
    A(f"s_add_u32 s{sT}, s{sT}, {WS_FLAG:#x}")
    A(f"s_lshl_b32 s3, s{sJ}, 3")
    A(f"v_mov_b32 v{vT0}, s3")
    A(f"v_lshlrev_b32 v{vT1}, 3, v{vL}")
    A("s_waitcnt vmcnt(0)")
    A("s_mov_b64 exec, 1")
    A(f"buffer_store_dwordx2 {r2(vT4)}, v{vT0}, {srd(sWS)}, s{sT} offen sc1")
    A("s_mov_b64 exec, 0xff")
    A(f"s_mov_b32 s{sCNT}, {SPIN}")
    stamp(3)
    LBL("L_poll0")
    A(f"buffer_load_dwordx2 {r2(vS)}, v{vT1}, {srd(sWS)}, s{sT} offen sc1")
    A("s_waitcnt vmcnt(0)")
    A(f"v_cmp_ne_u64 vcc, s[{sTAG}:{sTAG+1}], {r2(vS)}")
    A("s_cbranch_vccz L_poll0done")
    A(f"s_sub_u32 s{sCNT}, s{sCNT}, 1")
    A("s_cbranch_scc1 L_end")
    A("s_sleep 2")
    A("s_branch L_poll0")
    LBL("L_poll0done")
    A("s_mov_b64 exec, -1")
    stamp(4)
    A(f"v_lshrrev_b32 v{vT0}, 5, v{vL}")
    A(f"v_lshlrev_b32 v{vT0}, 11, v{vT0}")
    A(f"v_and_b32 v{vT1}, 31, v{vL}")
    A(f"v_lshl_add_u32 v{vT0}, v{vT1}, 4, v{vT0}")
    A(f"s_lshl_b32 s{sT}, s{sG}, 14")
    A(f"s_lshl_b32 s3, s{sCH}, 10")
    A(f"s_add_u32 s{sT}, s{sT}, s3")
    A(f"s_lshr_b32 s3, s{sJ}, 2")
    A(f"s_lshl_b32 s3, s3, 9")
    A(f"s_add_u32 s{sT}, s{sT}, s3")
    A(f"s_add_u32 s{sT}, s{sT}, {WS_Q:#x}")
    for i in range(4):
        A(f"buffer_load_dwordx4 {r4(vS+4*i)}, v{vT0}, {srd(sWS)}, s{sT} offen sc1")
        if i < 3: A(f"s_add_u32 s{sT}, s{sT}, 4096")
    A(f"v_lshlrev_b32 v{vT1}, 3, v{vT1}")
    A(f"s_lshl_b32 s3, s{sCH}, 8")
    A(f"v_add_u32 v{vT1}, s3, v{vT1}")
    A("s_waitcnt vmcnt(0)")
    for i in range(4): A(f"v_add_f32 v{vS+i}, v{vS+i}, v{vS+4+i}")
    for i in range(4): A(f"v_add_f32 v{vS+8+i}, v{vS+8+i}, v{vS+12+i}")
    for i in range(4): A(f"v_add_f32 v{vS+i}, v{vS+i}, v{vS+8+i}")
    for i in range(4): A(f"v_mov_b32 v{vS+4+i}, v{vS+i}")
    A("s_nop 1")
    for i in range(4): A(f"v_permlane32_swap_b32 v{vS+i}, v{vS+4+i}")
    for i in range(4): A(f"v_add_f32 v{vS+i}, v{vS+i}, v{vS+4+i}")
    A(f"v_cvt_pk_bf16_f32 v{vS+8}, v{vS}, v{vS+1}")
    A(f"v_cvt_pk_bf16_f32 v{vS+9}, v{vS+2}, v{vS+3}")
    A(f"ds_write_b64 v{vT1}, {r2(vS+8)} offset:{L_Q}")
    A(f"s_lshl_b32 s3, s{sCH}, 3")
    A(f"v_mov_b32 v{vT0}, s3")
    A("s_waitcnt lgkmcnt(0)")
    A("s_mov_b64 exec, 1")
    A(f"ds_write_b64 v{vT0}, {r2(vT4)} offset:{L_QF}")
    A("s_mov_b64 exec, -1")
    if opts.get('prio'): A("s_setprio 0")
    stamp(5)

    A("s_branch L_stream")
    LBL("L_stream0")
    A("s_barrier")
    LBL("L_stream")
    issued = []
    cur = {"so": None}
    def soff(m):
        if cur["so"] != m:
            A(f"s_add_u32 s{sT}, s{sSL}, {m*16384}")
            cur["so"] = m
    def ldK(n):
        soff(n >> 2)
        A(f"buffer_load_dwordx4 {r4(kslot(n))}, v{vKO}, {srd(sK)}, s{sT} offen offset:{(n&3)*1024} nt")
        issued.append(("K", n))
    def ldV(n):
        soff(n >> 2)
        A(f"buffer_load_dwordx4 {r4(vslot(n))}, v{vVO}, {srd(sV)}, s{sT} offen offset:{(n&3)*1024} nt")
        issued.append(("V", n))
    vWOO = vT3
    def ldW(n):
        if n % 3 == 0 and n:
            A(f"s_add_u32 s{sT2}, s{sT2}, {3*1152}")
        A(f"buffer_load_dwordx4 {r4(wslot(n))}, v{vWOO}, {srd(sWO)}, s{sT2} offen offset:{(n%3)*1152} nt")
        issued.append(("W", n))
    def wait(op):
        k = len(issued) - 1 - issued.index(op)
        A(f"s_waitcnt vmcnt({k})")
    for n in range(32): ldK(n)
    cur["so"] = None
    for n in range(NVP): ldV(n)
    stamp(6)
    A(f"v_and_b32 v{vT0}, 15, v{vL}")
    A(f"v_lshrrev_b32 v{vT1}, 4, v{vL}")
    A(f"v_mul_u32_u24 v{vWOO}, {16*1152}, v{vT1}")
    A(f"v_lshl_add_u32 v{vWOO}, v{vT0}, 4, v{vWOO}")
    A(f"v_cmp_lt_u32 vcc, 8, v{vT0}")
    A(f"v_bfrev_b32 v{vT0}, 1")
    A(f"s_lshl_b32 s{sT2}, s{sH}, 2")
    A(f"v_cndmask_b32 v{vWOO}, v{vWOO}, v{vT0}, vcc")
    A(f"s_and_b32 s3, s{sW}, 3")
    A(f"s_add_u32 s{sT2}, s{sT2}, s3")
    A(f"s_mul_i32 s{sT2}, s{sT2}, {64*1152}")
    A(f"s_mul_i32 s3, s{sJ}, 144")
    A(f"s_add_u32 s{sT2}, s{sT2}, s3")
    A(f"v_bfe_u32 v{vT0}, v{vL}, 3, 1")
    A(f"v_lshlrev_b32 v{vT0}, 8, v{vT0}")
    A(f"v_lshl_add_u32 v{vT0}, v{vT1}, 6, v{vT0}")
    A(f"v_and_b32 v{vT1}, 3, v{vL}")
    A(f"v_lshl_add_u32 v{vT0}, v{vT1}, 4, v{vT0}")
    A(f"v_mov_b32 v{vT1}, 0")
    A("s_waitcnt lgkmcnt(0)")
    A(f"s_add_u32 s{sTAG}, s{sE}, {TAGK:#x}")
    A(f"s_xor_b32 s{sTAG+1}, s{sTAG}, {TAGX:#x}")
    A(f"s_mov_b32 s{sCNT}, {SPIN}")
    if opts.get('nocomm') or opts.get('wqonly'): A("s_branch L_qready")
    LBL("L_qwait")
    A(f"ds_read_b128 {r4(vA0)}, v{vT1} offset:{L_QF}")
    A("s_waitcnt lgkmcnt(0)")
    A(f"v_cmp_ne_u64 vcc, s[{sTAG}:{sTAG+1}], {r2(vA0)}")
    A(f"v_cmp_ne_u64 s[{sEX}:{sEX+1}], s[{sTAG}:{sTAG+1}], {r2(vA0+2)}")
    A(f"s_or_b64 vcc, vcc, s[{sEX}:{sEX+1}]")
    A("s_cbranch_vccz L_qready")
    A(f"s_sub_u32 s{sCNT}, s{sCNT}, 1")
    A("s_cbranch_scc1 L_end")
    A("s_sleep 4")
    A("s_branch L_qwait")
    LBL("L_qready")
    A(f"ds_read_b128 {r4(vQ)}, v{vT0} offset:{L_Q}")
    stamp(7)
    A("s_waitcnt lgkmcnt(0)")
    def qk_mfma(b):
        wait(("K", 4 * b + 3))
        for i in range(4):
            n = 4 * b + i
            A(f"v_mfma_f32_16x16x32_bf16 {r4(kslot(n))}, {r4(kslot(n))}, {r4(vQ)}, 0")
    def qk_red(b):
        t = b >> 1; x = b & 1
        bm = 0x5 if x == 0 else 0xa
        for c in range(4):
            for i in range(4):
                n = 4 * b + i; d = vS + 4 * t + i
                if c == 0:
                    A(f"v_mov_b32_dpp v{d}, v{kslot(n)} quad_perm:[0,0,0,0] row_mask:0xf bank_mask:{bm:#x}")
                else:
                    A(f"v_add_f32_dpp v{d}, v{kslot(n)+c}, v{d} quad_perm:[{c},{c},{c},{c}] row_mask:0xf bank_mask:{bm:#x}")
    refill = [("V", n) for n in range(NVP, 32)] + ([] if opts.get('nowld') else [("W", n) for n in range(16)])
    qk_mfma(0)
    for b in range(8):
        if b + 1 < 8: qk_mfma(b + 1)
        else: A("s_nop 7")
        if b == 0: A("s_nop 3")
        qk_red(b)
        for kind, n in refill[4 * b: 4 * b + 4]:
            (ldV if kind == "V" else ldW)(n)
    A(f"v_max3_f32 v{vT0}, v{vS}, v{vS+1}, v{vS+2}")
    A(f"v_max3_f32 v{vT1}, v{vS+3}, v{vS+4}, v{vS+5}")
    A(f"v_max3_f32 v{vT2}, v{vS+6}, v{vS+7}, v{vS+8}")
    A(f"v_max3_f32 v{vT0}, v{vT0}, v{vS+9}, v{vS+10}")
    A(f"v_max3_f32 v{vT1}, v{vT1}, v{vS+11}, v{vS+12}")
    A(f"v_max3_f32 v{vT2}, v{vT2}, v{vS+13}, v{vS+14}")
    A(f"v_max3_f32 v{vT0}, v{vT0}, v{vT1}, v{vS+15}")
    A(f"v_max_f32 v{vM}, v{vT0}, v{vT2}")
    def allred(v, t, op):
        A("s_nop 1")
        A(f"{op}_dpp v{v}, v{v}, v{v} row_half_mirror row_mask:0xf bank_mask:0xf")
        A(f"v_mov_b32 v{t}, v{v}")
        A("s_nop 1")
        A(f"v_permlane16_swap_b32 v{v}, v{t}")
        A(f"{op} v{v}, v{v}, v{t}")
        A(f"v_mov_b32 v{t}, v{v}")
        A("s_nop 1")
        A(f"v_permlane32_swap_b32 v{v}, v{t}")
        A(f"{op} v{v}, v{v}, v{t}")
    allred(vM, vT0, "v_max_f32")
    A(f"v_mul_f32 v{vM}, s{sC}, v{vM}")
    for k in range(16): A(f"v_fma_f32 v{vS+k}, v{vS+k}, s{sC}, -v{vM}")
    for k in range(16): A(f"v_exp_f32 v{vS+k}, v{vS+k}")
    A(f"v_add_f32 v{vLS}, v{vS}, v{vS+1}")
    A(f"v_add_f32 v{vT0}, v{vS+2}, v{vS+3}")
    for k in range(4, 16, 2):
        A(f"v_add_f32 v{vLS}, v{vLS}, v{vS+k}")
        A(f"v_add_f32 v{vT0}, v{vT0}, v{vS+k+1}")
    A(f"v_add_f32 v{vLS}, v{vLS}, v{vT0}")
    for k in range(16): A(f"v_cvt_pk_bf16_f32 v{vS+k}, v{vS+k}, v{vS+k}")
    allred(vLS, vT0, "v_add_f32")
    A(f"v_lshlrev_b32 v{vT0}, 3, v{vL}")
    A(f"s_lshl_b32 s3, s{sW}, 3")
    A(f"v_add_u32 v{vT0}, s3, v{vT0}")
    A("s_mov_b64 exec, 0x101")
    A(f"ds_write_b64 v{vT0}, {r2(vM)} offset:{L_ST}")
    A("s_mov_b64 exec, -1")
    stamp(8, True)
    def onehot(dst, src, x):
        for w in range(4):
            if (w >> 1) == x:
                A(f"v_and_b32 v{dst+w}, v{src}, v{vMK+w}")
            else:
                sh = "row_shr:4" if x == 0 else "row_shl:4"
                A(f"v_and_b32_dpp v{dst+w}, v{src}, v{vMK+w} {sh} row_mask:0xf bank_mask:0xf bound_ctrl:0")
    def pv_a(n): onehot(Ab[n & 1], vS + 4 * (n >> 3) + (n & 3), (n >> 2) & 1)
    pv_a(0)
    for n in range(32):
        if n + 1 < 32: pv_a(n + 1)
        wait(("V", n))
        A(f"v_mfma_f32_16x16x32_bf16 {r4(vACC)}, {r4(Ab[n&1])}, {r4(vslot(n))}, {'0' if n == 0 else r4(vACC)}")
    A(f"v_lshrrev_b32 v{vT0}, 5, v{vL}")
    A(f"v_lshlrev_b32 v{vT0}, 9, v{vT0}")
    A(f"v_and_b32 v{vT1}, 15, v{vL}")
    A(f"v_lshl_add_u32 v{vT0}, v{vT1}, 5, v{vT0}")
    A(f"v_bfe_u32 v{vT1}, v{vL}, 4, 1")
    A(f"v_lshl_add_u32 v{vT0}, v{vT1}, 4, v{vT0}")
    A(f"s_lshl_b32 s3, s{sW}, 10")
    A(f"v_add_u32 v{vT0}, s3, v{vT0}")
    A(f"ds_write_b128 v{vT0}, {r4(vACC)} offset:{L_ACC}")
    stamp(9, True)
    if opts.get('nocomm') or opts.get('wqonly'): A("s_branch L_nochk")
    A(f"s_cmp_eq_u32 s{sW}, 1")
    A("s_cbranch_scc0 L_nochk")
    A(f"s_cmp_lt_u32 s{sH}, 9")
    A("s_cbranch_scc0 L_nochk")
    A(f"v_lshlrev_b32 v{vT1}, 8, v{vL}")
    A(f"s_lshl_b32 s{sT}, s{sP}, 12")
    A(f"s_lshl_b32 s3, s{sJ}, 3")
    A(f"s_add_u32 s{sT}, s{sT}, s3")
    A(f"s_add_u32 s{sT}, s{sT}, {WS_FLAG + 128:#x}")
    A("s_mov_b64 exec, 0xffff")
    A(f"s_mov_b32 s{sCNT}, {SPIN}")
    LBL("L_poll2c")
    A(f"buffer_load_dwordx2 {r2(vS)}, v{vT1}, {srd(sWS)}, s{sT} offen sc1")
    A("s_waitcnt vmcnt(0)")
    A(f"v_cmp_ne_u64 vcc, s[{sTAG}:{sTAG+1}], {r2(vS)}")
    A("s_cbranch_vccz L_poll2cdone")
    A(f"s_sub_u32 s{sCNT}, s{sCNT}, 1")
    A("s_cbranch_scc1 L_end")
    A("s_sleep 2")
    A("s_branch L_poll2c")
    LBL("L_poll2cdone")
    A("s_mov_b64 exec, -1")
    LBL("L_nochk")
    A("s_waitcnt lgkmcnt(0)")
    A("s_barrier")
    stamp(10, True)
    if opts.get('nocomm') or opts.get('wqonly'):
        A("s_waitcnt vmcnt(0)")
        stamp(11)
        A("s_branch L_end")
    A(f"s_cmp_ge_u32 s{sW}, 4")
    A("s_cbranch_scc1 L_late")
    A(f"s_cmp_ge_u32 s{sW}, 2")
    A("s_cbranch_scc1 L_end")
    A(f"s_cmp_eq_u32 s{sW}, 1")
    A("s_cbranch_scc1 L_br")
    vST = vS
    vAC = vVP
    A(f"v_lshrrev_b32 v{vT0}, 5, v{vL}")
    A(f"v_lshlrev_b32 v{vT0}, 6, v{vT0}")
    for i in range(4): A(f"ds_read_b128 {r4(vST+4*i)}, v{vT0} offset:{L_ST+16*i}")
    for w in range(8): A(f"ds_read_b128 {r4(vAC+4*w)}, v{vVO} offset:{L_ACC+1024*w}")
    A(f"s_lshl_b32 s{sT}, s{sG}, 3")
    A(f"s_add_u32 s{sT}, s{sT}, s{sJ}")
    A(f"s_mul_i32 s{sT}, s{sT}, {O_STR}")
    A(f"s_add_u32 s{sT}, s{sT}, {WS_O:#x}")
    A(f"v_lshrrev_b32 v{vT1}, 3, v{vT0}")
    A("s_waitcnt lgkmcnt(8)")
    A(f"v_max3_f32 v{vM}, v{vST}, v{vST+2}, v{vST+4}")
    A(f"v_max3_f32 v{vM}, v{vM}, v{vST+6}, v{vST+8}")
    A(f"v_max3_f32 v{vM}, v{vM}, v{vST+10}, v{vST+12}")
    A(f"v_max_f32 v{vM}, v{vM}, v{vST+14}")
    for w in range(8): A(f"v_sub_f32 v{vST+2*w}, v{vST+2*w}, v{vM}")
    for w in range(8): A(f"v_exp_f32 v{vST+2*w}, v{vST+2*w}")
    A(f"v_mul_f32 v{vLS}, v{vST}, v{vST+1}")
    for w in range(1, 8): A(f"v_fmac_f32 v{vLS}, v{vST+2*w}, v{vST+2*w+1}")
    for w in range(8):
        A(f"s_waitcnt lgkmcnt({7-w})")
        for i in range(4):
            if w == 0: A(f"v_mul_f32 v{vACC+i}, v{vST}, v{vAC+i}")
            else: A(f"v_fmac_f32 v{vACC+i}, v{vST+2*w}, v{vAC+4*w+i}")
    for i in range(4): A(f"v_min_u32 v{vACC+i}, -2, v{vACC+i}")
    A(f"buffer_store_dwordx4 {r4(vACC)}, v{vVO}, {srd(sWS)}, s{sT} offen sc1")
    A(f"v_min_u32 v{vM}, -2, v{vM}")
    A(f"v_min_u32 v{vLS}, -2, v{vLS}")
    A(f"s_mov_b32 exec_lo, 1")
    A(f"s_mov_b32 exec_hi, 1")
    A(f"buffer_store_dwordx2 {r2(vM)}, v{vT1}, {srd(sWS)}, s{sT} offen offset:1024 sc1")
    A("s_mov_b64 exec, -1")
    stamp(11, True)
    A("s_branch L_br")

    LBL("L_late")
    vF = vS
    vMS = vS + 8
    A(f"v_bfe_u32 v{vT0}, v{vL}, 3, 1")
    A(f"v_and_b32 v{vT1}, 3, v{vL}")
    A(f"v_lshl_add_u32 v{vT0}, v{vT0}, 2, v{vT1}")
    A(f"v_mul_u32_u24 v{vT0}, {O_STR}, v{vT0}")
    A(f"v_lshrrev_b32 v{vT1}, 4, v{vL}")
    A(f"v_lshl_add_u32 v{vT1}, v{vT1}, 6, v{vT0}")
    A(f"v_bfe_u32 v{vT2}, v{vL}, 2, 1")
    A(f"v_lshl_add_u32 v{vT1}, v{vT2}, 5, v{vT1}")
    A(f"s_mul_i32 s{sT}, s{sG}, {8*O_STR}")
    A(f"s_add_u32 s{sT}, s{sT}, {WS_O:#x}")
    A(f"s_and_b32 s3, s{sW}, 3")
    A(f"s_lshl_b32 s{sT2}, s3, 8")
    A(f"s_add_u32 s{sT2}, s{sT2}, s{sT}")
    A(f"s_lshr_b32 s3, s3, 1")
    A(f"s_lshl_b32 s3, s3, 3")
    A(f"s_add_u32 s{sT}, s{sT}, s3")
    A(f"s_mov_b32 s{sCNT}, {SPIN}")
    LBL("L_poll1")
    A(f"buffer_load_dwordx2 {r2(vMS)}, v{vT0}, {srd(sWS)}, s{sT} offen offset:1024 sc1")
    A(f"buffer_load_dwordx4 {r4(vF)}, v{vT1}, {srd(sWS)}, s{sT2} offen sc1")
    A(f"buffer_load_dwordx4 {r4(vF+4)}, v{vT1}, {srd(sWS)}, s{sT2} offen offset:16 sc1")
    A("s_waitcnt vmcnt(0)")
    A(f"v_max3_u32 v{vT2}, v{vMS}, v{vMS+1}, v{vF}")
    A(f"v_max3_u32 v{vT3}, v{vF+1}, v{vF+2}, v{vF+3}")
    A(f"v_max3_u32 v{vT2}, v{vT2}, v{vF+4}, v{vF+5}")
    A(f"v_max3_u32 v{vT3}, v{vT3}, v{vF+6}, v{vF+7}")
    A(f"v_max_u32 v{vT2}, v{vT2}, v{vT3}")
    A(f"v_cmp_eq_u32 vcc, -1, v{vT2}")
    A("s_cbranch_vccz L_poll1done")
    A(f"s_sub_u32 s{sCNT}, s{sCNT}, 1")
    A("s_cbranch_scc1 L_end")
    A("s_sleep 1")
    A("s_branch L_poll1")
    LBL("L_poll1done")
    stamp(11, True)
    X1 = "quad_perm:[1,0,3,2] row_mask:0xf bank_mask:0xf"
    X2 = "quad_perm:[2,3,0,1] row_mask:0xf bank_mask:0xf"
    A(f"v_max_f32_dpp v{vT2}, v{vMS}, v{vMS} {X1}")
    A("s_nop 1")
    A(f"v_max_f32_dpp v{vT2}, v{vT2}, v{vT2} {X2}")
    A(f"v_sub_f32 v{vT2}, v{vMS}, v{vT2}")
    A(f"v_exp_f32 v{vT2}, v{vT2}")
    A("s_nop 0")
    A(f"v_mul_f32 v{vT3}, v{vT2}, v{vMS+1}")
    A("s_nop 1")
    A(f"v_add_f32_dpp v{vT3}, v{vT3}, v{vT3} {X1}")
    A("s_nop 1")
    A(f"v_add_f32_dpp v{vT3}, v{vT3}, v{vT3} {X2}")
    A(f"v_rcp_f32 v{vT3}, v{vT3}")
    A("s_nop 0")
    A(f"v_mul_f32 v{vT2}, v{vT2}, v{vT3}")
    for i in range(8): A(f"v_mul_f32 v{vF+i}, v{vT2}, v{vF+i}")
    for i in range(8): A(f"v_add_f32_dpp v{vF+i}, v{vF+i}, v{vF+i} {X1}")
    for i in range(8): A(f"v_add_f32_dpp v{vF+i}, v{vF+i}, v{vF+i} {X2}")
    for i in range(8): A(f"v_cvt_pk_bf16_f32 v{vF+i}, v{vF+i}, v{vF+i}")
    def op_a(n): onehot(Ab[n & 1], vF + (n & 7), n >> 3)
    op_a(0)
    for n in range(16):
        if n + 1 < 16: op_a(n + 1)
        A(f"v_mfma_f32_16x16x32_bf16 {r4(vACC)}, {r4(Ab[n&1])}, {r4(wslot(n))}, {'0' if n == 0 else r4(vACC)}")
    A(f"v_lshrrev_b32 v{vT0}, 5, v{vL}")
    A(f"v_mul_u32_u24 v{vT0}, {18*16}, v{vT0}")
    A(f"v_and_b32 v{vT1}, 15, v{vL}")
    A(f"v_lshl_add_u32 v{vT0}, v{vT1}, 5, v{vT0}")
    A(f"v_bfe_u32 v{vT1}, v{vL}, 4, 1")
    A(f"v_lshl_add_u32 v{vT0}, v{vT1}, 4, v{vT0}")
    A(f"s_and_b32 s3, s{sW}, 3")
    A(f"s_lshl_b32 s3, s3, 10")
    A(f"v_add_u32 v{vT0}, s3, v{vT0}")
    A("s_mov_b32 exec_lo, 0x01ff01ff")
    A("s_mov_b32 exec_hi, 0x01ff01ff")
    A(f"ds_write_b128 v{vT0}, {r4(vACC)} offset:{L_OUT}")
    A("s_waitcnt lgkmcnt(0)")
    A("s_barrier")
    stamp(12)
    A("s_branch L_end")

    LBL("L_br")
    A("s_barrier")
    stamp(12)
    A(f"s_lshl_b32 s{sT}, s{sP}, 3")
    A(f"s_add_u32 s{sT}, s{sT}, s{sJ}")
    A(f"s_mul_i32 s{sT}, s{sT}, {16*R_STR}")
    A(f"s_add_u32 s{sT}, s{sT}, {WS_R:#x}")
    A(f"s_cmp_eq_u32 s{sW}, 1")
    A("s_cbranch_scc1 L_final")
    A("s_mov_b32 exec_hi, 0xf")
    for w in range(4): A(f"ds_read_b128 {r4(vS+4*w)}, v{vVO} offset:{L_OUT+1024*w}")
    A(f"s_mul_i32 s3, s{sH}, {R_STR}")
    A(f"s_add_u32 s{sT}, s{sT}, s3")
    A("s_waitcnt lgkmcnt(2)")
    for i in range(4): A(f"v_add_f32 v{vS+i}, v{vS+i}, v{vS+4+i}")
    A("s_waitcnt lgkmcnt(0)")
    for i in range(4): A(f"v_add_f32 v{vS+8+i}, v{vS+8+i}, v{vS+12+i}")
    for i in range(4): A(f"v_add_f32 v{vS+i}, v{vS+i}, v{vS+8+i}")
    for i in range(4): A(f"v_min_u32 v{vS+i}, -2, v{vS+i}")
    A(f"buffer_store_dwordx4 {r4(vS)}, v{vVO}, {srd(sWS)}, s{sT} offen sc1")
    stamp(13)
    A("s_branch L_end")

    LBL("L_final")
    A(f"s_cmp_lt_u32 s{sH}, 9")
    A("s_cbranch_scc0 L_end")
    A(f"v_lshrrev_b32 v{vT0}, 2, v{vL}")
    A(f"v_mul_u32_u24 v{vT0}, {R_STR}, v{vT0}")
    A(f"v_and_b32 v{vT1}, 3, v{vL}")
    A(f"v_lshl_add_u32 v{vT0}, v{vT1}, 4, v{vT0}")
    A(f"s_lshl_b32 s3, s{sH}, 6")
    A(f"s_add_u32 s{sT}, s{sT}, s3")
    A(f"s_lshl_b32 s3, s{sH}, 2")
    A(f"v_add_u32 v{vT1}, s3, v{vT1}")
    A(f"v_cmp_lt_u32 vcc, 17, v{vT1}")
    A(f"v_lshlrev_b32 v{vT1}, 3, v{vT1}")
    A(f"v_add_u32 v{vT2}, {2304-144}, v{vT1}")
    A(f"s_mul_i32 s{sT2}, s{sP}, 1152")
    A(f"v_cndmask_b32 v{vT1}, v{vT1}, v{vT2}, vcc")
    A(f"s_mul_i32 s3, s{sJ}, 144")
    A(f"s_add_u32 s{sT2}, s{sT2}, s3")
    A(f"s_mov_b32 s{sCNT}, {SPIN}")
    LBL("L_poll2")
    A(f"buffer_load_dwordx4 {r4(vS)}, v{vT0}, {srd(sWS)}, s{sT} offen sc1")
    A("s_waitcnt vmcnt(0)")
    A(f"v_max3_u32 v{vT2}, v{vS}, v{vS+1}, v{vS+2}")
    A(f"v_max_u32 v{vT2}, v{vT2}, v{vS+3}")
    A(f"v_cmp_eq_u32 vcc, -1, v{vT2}")
    A("s_cbranch_vccz L_poll2done")
    A(f"s_sub_u32 s{sCNT}, s{sCNT}, 1")
    A("s_cbranch_scc1 L_end")
    A("s_sleep 1")
    A("s_branch L_poll2")
    LBL("L_poll2done")
    stamp(13)
    for rot in (4, 8):
        for i in range(4): A(f"v_add_f32_dpp v{vS+i}, v{vS+i}, v{vS+i} row_ror:{rot} row_mask:0xf bank_mask:0xf")
    for sw in ("v_permlane16_swap_b32", "v_permlane32_swap_b32"):
        for i in range(4): A(f"v_mov_b32 v{vS+4+i}, v{vS+i}")
        for i in range(4): A(f"{sw} v{vS+i}, v{vS+4+i}")
        for i in range(4): A(f"v_add_f32 v{vS+i}, v{vS+i}, v{vS+4+i}")
    A(f"v_cvt_pk_bf16_f32 v{vS+4}, v{vS}, v{vS+1}")
    A(f"v_cvt_pk_bf16_f32 v{vS+5}, v{vS+2}, v{vS+3}")
    A("s_mov_b64 exec, 0xf")
    A(f"buffer_store_dwordx2 {r2(vS+4)}, v{vT1}, {srd(sOUT)}, s{sT2} offen")
    A(f"s_or_b32 s3, s{sH}, s{sJ}")
    A("s_cbranch_scc1 L_end")
    A("s_mov_b64 exec, 1")
    A(f"v_mov_b32 v{vT0}, s{sTAG}")
    A(f"s_lshl_b32 s3, s{sP}, 8")
    A(f"v_mov_b32 v{vT1}, s3")
    A(f"buffer_store_dword v{vT0}, v{vT1}, {srd(sWS)}, 0 offen sc1")
    LBL("L_end")
    if stamps:
        A("s_cmp_ge_u32 s2, 256")
        A("s_cbranch_scc1 L_end2")
        stamp(14)
        A("s_getreg_b32 s94, hwreg(HW_REG_XCC_ID)")
        A("s_mov_b32 s95, 0")
        A("s_mov_b64 exec, 1")
        A(f"s_add_u32 s4, s{sWS}, 0x8000000"); A(f"s_addc_u32 s5, s{sWS+1}, 0")
        A(f"s_lshl_b32 s3, s2, 3"); A(f"s_add_u32 s3, s3, s{sW}"); A("s_lshl_b32 s3, s3, 7")
        A("v_mov_b32 v1, s3")
        A("s_waitcnt lgkmcnt(0) vmcnt(0)")
        for i in range(8):
            for k in range(4): A(f"v_mov_b32 v{4+k}, s{64+4*i+k}")
            A(f"global_store_dwordx4 v1, v[4:7], s[4:5] offset:{16*i}")
            A("s_waitcnt vmcnt(0)")
        LBL("L_end2")
    A("s_endpgm")
    L.append('.section .rodata,"a"'); L.append(".p2align 6"); L.append(f".amdhsa_kernel {NAME}_kernel")
    L.append("  .amdhsa_next_free_vgpr 256"); L.append(f"  .amdhsa_next_free_sgpr {96 if stamps else 64}"); L.append("  .amdhsa_accum_offset 256")
    L.append("  .amdhsa_group_segment_fixed_size 0"); L.append("  .amdhsa_kernarg_size 104"); L.append("  .amdhsa_user_sgpr_count 2")
    L.append("  .amdhsa_user_sgpr_kernarg_segment_ptr 1"); L.append("  .amdhsa_system_sgpr_workgroup_id_x 1"); L.append(".end_amdhsa_kernel")
    return "\n".join(L) + "\n"

def f2u(f):
    import struct
    return struct.unpack("<I", struct.pack("<f", f))[0]

if __name__ == "__main__":
    open("k1.s", "w").write(gen(False))
    open("k1_st.s", "w").write(gen(True))
    open("k1_st_b0.s", "w").write(gen(True, opts=dict(cbar=0)))
    open("k1_b0.s", "w").write(gen(False, opts=dict(cbar=0)))
    open("k1_st_c.s", "w").write(gen(True, opts=dict(prio=1)))
    open("a_nocomm.s", "w").write(gen(True, opts=dict(nocomm=1)))
    open("a_nocomm_nowo.s", "w").write(gen(True, opts=dict(nocomm=1, nowo=1)))
    open("a_nocomm_nowld.s", "w").write(gen(True, opts=dict(nocomm=1, nowld=1)))
    open("a_wqonly.s", "w").write(gen(True, opts=dict(wqonly=1)))
    open("a_wqonly_nowld.s", "w").write(gen(True, opts=dict(wqonly=1, nowld=1)))
```

```python
import sys, math
NAME = "concat_heads__gqa_block_cached__gqa_block_cached__decode"

WS_E    = 0x0
WS_FLAG = 0x1000
WS_Q    = 0x10000
WS_O    = 0x90000
WS_R    = 0xE0000
WS_SIZE = 0x200000
O_STR = 1152
R_STR = 640
L_Q = 0x000; L_QF = 0x200; L_ST = 0x240; L_ACC = 0x400; L_OUT = 0x2400; L_SIZE = 0x3400

TAGK = 0x9E3779B9
TAGX = 0x5BD1E995
SPIN = 1 << 20

def gen(stamps=False, NVP=20, opts=None):
    opts = opts or {}
    L = []
    def A(s): L.append("    " + s)
    def LBL(s): L.append(s + ":")
    def C(s): L.append("    ; " + s)
    nst = [0]
    def stamp(i, late=False):
        if late and opts.get('commonly'): return
        if stamps:
            A(f"s_memrealtime s[{64+2*i}:{65+2*i}]")
    L.append(f"; @launch grid=(256,1,1) block=(512,1,1) lds={L_SIZE}")
    L.append('.amdgcn_target "amdgcn-amd-amdhsa--gfx950"')
    L.append(".text"); L.append(f".globl {NAME}_kernel"); L.append(".p2align 8"); L.append(f".type {NAME}_kernel,@function")
    L.append(f"{NAME}_kernel:")
    sK, sV, sWO, sWQ, sX, sWS, sOUT = 8, 12, 16, 20, 24, 28, 32
    sW, sP, sH, sJ, sG, sSL, sT, sE = 36, 37, 38, 39, 40, 41, 42, 43
    sTAG = 44
    sC = 46; sCNT = 47; sT2 = 48; sT3 = 49; sSELLO = 50; sSELHI = 51; sEX = 52
    sM = 54
    def srd(b): return f"s[{b}:{b+3}]"
    vKO, vVO = 1, 2
    vT0, vT1, vT2, vT3 = 3, 4, 5, 6
    vL = 7
    vQ = 8
    vMK = 12
    vA0 = 16
    vA1 = 20
    vACC = 24
    vM, vLS = 28, 29
    vT4, vT5 = 30, 31
    vS = 32
    vVP = 48
    vKS = 128
    assert vVP + 4 * NVP <= vKS
    def kslot(n): return vKS + 4 * n
    def vslot(n): return vVP + 4 * n if n < NVP else kslot(n - NVP)
    NVR = 32 - NVP
    def wslot(n): return kslot(NVR + n)
    assert NVR + 16 <= 32 and NVR % 4 == 0
    def r4(b): return f"v[{b}:{b+3}]"
    def r2(b): return f"v[{b}:{b+1}]"

    stamp(0)
    A("s_cmp_ge_u32 s2, 256")
    A("s_cbranch_scc1 L_end")
    A(f"s_lshr_b32 s{sP}, s2, 7")
    A(f"s_mul_i32 s3, s{sP}, 40")
    A(f"s_load_dwordx2 s[{sK}:{sK+1}], s[0:1], s3 offset:8")
    A(f"s_load_dwordx2 s[{sV}:{sV+1}], s[0:1], s3 offset:16")
    A(f"s_load_dwordx2 s[{sWQ}:{sWQ+1}], s[0:1], s3 offset:24")
    A(f"s_load_dwordx2 s[{sX}:{sX+1}], s[0:1], s3 offset:0")
    A(f"s_load_dwordx2 s[{sWS}:{sWS+1}], s[0:1], 96")
    A(f"s_load_dwordx2 s[{sWO}:{sWO+1}], s[0:1], s3 offset:32")
    A(f"s_load_dwordx2 s[{sOUT}:{sOUT+1}], s[0:1], 80")
    A(f"v_lshrrev_b32 v{vT0}, 6, v0")
    A(f"v_and_b32 v{vL}, 63, v0")
    A(f"v_readfirstlane_b32 s{sW}, v{vT0}")
    A(f"s_and_b32 s{sH}, s2, 7")
    A(f"s_bfe_u32 s3, s2, 0x10006")
    A(f"s_lshl_b32 s3, s3, 3")
    A(f"s_add_u32 s{sH}, s{sH}, s3")
    A(f"s_bfe_u32 s{sJ}, s2, 0x30003")
    A(f"s_lshl_b32 s{sG}, s{sP}, 4")
    A(f"s_add_u32 s{sG}, s{sG}, s{sH}")
    A(f"s_lshr_b32 s3, s{sJ}, 2")
    A(f"s_lshl_b32 s{sSL}, s3, 24")
    A(f"s_lshl_b32 s3, s{sH}, 20")
    A(f"s_add_u32 s{sSL}, s{sSL}, s3")
    A(f"s_and_b32 s3, s{sJ}, 3")
    A(f"s_lshl_b32 s3, s3, 18")
    A(f"s_add_u32 s{sSL}, s{sSL}, s3")
    A(f"s_and_b32 s3, s{sW}, 3")
    A(f"s_lshl_b32 s3, s3, 12")
    A(f"s_add_u32 s{sSL}, s{sSL}, s3")
    A(f"s_lshr_b32 s3, s{sW}, 2")
    A(f"s_lshl_b32 s3, s3, 17")
    A(f"s_add_u32 s{sSL}, s{sSL}, s3")
    for b, sz in ((sK, 0x2000000), (sV, 0x2000000), (sWQ, 576*8192), (sX, 2304), (sWS, WS_SIZE), (sOUT, 4608)):
        A(f"s_mov_b32 s{b+2}, {sz:#x}"); A(f"s_mov_b32 s{b+3}, 0x20000")
    A(f"s_cmp_ge_u32 s{sW}, 4")
    A(f"s_cselect_b32 s{sWO+2}, {0 if opts.get('nowo') else 4096*1152:#x}, 0")
    A(f"s_mov_b32 s{sWO+3}, 0x20000")
    A(f"v_lshlrev_b32 v{vVO}, 4, v{vL}")
    A(f"v_and_b32 v{vT0}, 3, v{vL}")
    A(f"v_lshlrev_b32 v{vT0}, 4, v{vT0}")
    A(f"v_bfe_u32 v{vT1}, v{vL}, 2, 2")
    A(f"v_lshlrev_b32 v{vT1}, 8, v{vT1}")
    A(f"v_lshrrev_b32 v{vT2}, 4, v{vL}")
    A(f"v_lshlrev_b32 v{vKO}, 6, v{vT2}")
    A(f"v_add3_u32 v{vKO}, v{vKO}, v{vT0}, v{vT1}")
    A(f"v_and_b32 v{vT0}, 1, v{vL}")
    A(f"v_lshlrev_b32 v{vT0}, 4, v{vT0}")
    A(f"v_mov_b32 v{vT1}, 0xffff")
    A(f"v_lshlrev_b32 v{vT0}, v{vT0}, v{vT1}")
    A(f"v_bfe_u32 v{vT1}, v{vL}, 1, 2")
    for w in range(4): A(f"v_cmp_eq_u32 s[{sM+2*w}:{sM+2*w+1}], {w}, v{vT1}")
    A("s_nop 1")
    for w in range(4): A(f"v_cndmask_b32 v{vMK+w}, 0, v{vT0}, s[{sM+2*w}:{sM+2*w+1}]")
    A(f"s_mov_b32 s{sC}, {f2u(math.log2(math.e)/math.sqrt(128.0)):#x}")
    for i in range(4): A(f"v_mov_b32 v{vA0+i}, 0")
    A("s_mov_b64 exec, 1")
    A(f"ds_write_b128 v{vA0}, {r4(vA0)} offset:{L_QF}")
    A("s_mov_b64 exec, -1")
    A("s_waitcnt lgkmcnt(0)")
    stamp(1)
    A(f"s_lshl_b32 s3, s{sP}, 8")
    A(f"s_load_dword s{sE}, s[{sWS}:{sWS+1}], s3")
    if opts.get('nocomm'): A("s_branch L_stream")
    A(f"s_cmp_ge_u32 s{sW}, 2")
    A("s_cbranch_scc1 L_stream0")

    C("---- q projection: wave 6+c handles head c of the pair, rows 72j..72j+71 ----")
    if opts.get('prio'): A("s_setprio 3")
    sCH = sT3
    A(f"s_mov_b32 s{sCH}, s{sW}")
    vX = vVP
    vWQO = vT4
    A(f"v_bfe_u32 v{vT0}, v{vL}, 3, 1")
    A(f"v_mul_u32_u24 v{vT0}, 1152, v{vT0}")
    A(f"v_mad_u32_u24 v{vT0}, v{vT2}, 36, v{vT0}")
    A(f"s_mul_i32 s{sT}, s{sJ}, 144")
    A(f"buffer_load_dwordx4 {r4(vX)}, v{vT0}, {srd(sX)}, s{sT} offen")
    A(f"buffer_load_dwordx4 {r4(vX+4)}, v{vT0}, {srd(sX)}, s{sT} offen offset:16")
    A(f"buffer_load_dword v{vX+8}, v{vT0}, {srd(sX)}, s{sT} offen offset:32")
    A(f"v_and_b32 v{vT1}, 15, v{vL}")
    A(f"v_lshlrev_b32 v{vT1}, 4, v{vT1}")
    A(f"v_mul_u32_u24 v{vWQO}, {18*8192}, v{vT2}")
    A(f"v_add_u32 v{vWQO}, v{vWQO}, v{vT1}")
    A(f"s_mul_i32 s{sT}, s{sJ}, {72*8192}")
    A(f"s_lshl_b32 s3, s{sH}, 9")
    A(f"s_add_u32 s{sT}, s{sT}, s3")
    A(f"s_lshl_b32 s3, s{sCH}, 8")
    A(f"s_add_u32 s{sT}, s{sT}, s3")
    for n in range(18):
        A(f"buffer_load_dwordx4 {r4(kslot(n))}, v{vWQO}, {srd(sWQ)}, s{sT} offen {opts.get('wqflags','nt')}")
        if n < 17: A(f"s_add_u32 s{sT}, s{sT}, 8192")
        if n == opts.get('cbar', 17): A("s_barrier")
    opts.get("commonly") and stamp(8)
    vSENT = vS
    for i in range(4): A(f"v_mov_b32 v{vSENT+i}, -1")
    A(f"s_lshl_b32 s{sT2}, s{sG}, 3")
    A(f"s_add_u32 s{sT2}, s{sT2}, s{sJ}")
    A(f"s_cmp_eq_u32 s{sCH}, 0")
    A("s_cbranch_scc0 L_clrR")
    A(f"s_mul_i32 s{sT}, s{sT2}, {O_STR}")
    A(f"s_add_u32 s{sT}, s{sT}, {WS_O:#x}")
    A(f"buffer_store_dwordx4 {r4(vSENT)}, v{vVO}, {srd(sWS)}, s{sT} offen sc1")
    A(f"s_mov_b64 exec, 1")
    A(f"buffer_store_dwordx4 {r4(vSENT)}, v{vVO}, {srd(sWS)}, s{sT} offen offset:1024 sc1")
    A(f"s_branch L_clrdone")
    LBL("L_clrR")
    A(f"s_lshl_b32 s{sT}, s{sP}, 3")
    A(f"s_add_u32 s{sT}, s{sT}, s{sJ}")
    A(f"s_lshl_b32 s{sT}, s{sT}, 4")
    A(f"s_add_u32 s{sT}, s{sT}, s{sH}")
    A(f"s_mul_i32 s{sT}, s{sT}, {R_STR}")
    A(f"s_add_u32 s{sT}, s{sT}, {WS_R:#x}")
    A("s_mov_b32 exec_hi, 0xf")
    A(f"buffer_store_dwordx4 {r4(vSENT)}, v{vVO}, {srd(sWS)}, s{sT} offen sc1")
    A(f"s_mov_b64 exec, 1")
    A(f"buffer_store_dwordx4 {r4(vSENT)}, v{vVO}, {srd(sWS)}, s{sT} offen sc1")
    LBL("L_clrdone")
    A("s_mov_b64 exec, -1")
    A(f"s_mov_b32 s{sSELLO}, 0x01000100")
    A(f"s_mov_b32 s{sSELHI}, 0x03020302")
    Ab = [vA0, vA1]
    def xop(n):
        a = Ab[n & 1]
        A(f"v_perm_b32 v{vT0}, v{vX + (n>>1)}, v{vX + (n>>1)}, s{sSELHI if n & 1 else sSELLO}")
        for w in range(4): A(f"v_and_b32 v{a+w}, v{vT0}, v{vMK+w}")
    A("s_waitcnt vmcnt(20)")
    opts.get("commonly") and stamp(9)
    xop(0)
    for n in range(18):
        if n + 1 < 18: xop(n + 1)
        else: A("s_nop 1")
        A(f"s_waitcnt vmcnt({17 - n + 2})")
        if n == 0: opts.get("commonly") and stamp(10)
        if n == 9: opts.get("commonly") and stamp(11)
        A(f"v_mfma_f32_16x16x32_bf16 {r4(vACC)}, {r4(Ab[n&1])}, {r4(kslot(n))}, {'0' if n == 0 else r4(vACC)}")
    A(f"v_lshrrev_b32 v{vT0}, 5, v{vL}")
    A(f"v_lshlrev_b32 v{vT0}, 9, v{vT0}")
    A(f"v_and_b32 v{vT1}, 15, v{vL}")
    A(f"v_lshlrev_b32 v{vT1}, 5, v{vT1}")
    A(f"v_bfe_u32 v{vT3}, v{vL}, 4, 1")
    A(f"v_lshlrev_b32 v{vT3}, 4, v{vT3}")
    A(f"v_add3_u32 v{vT0}, v{vT0}, v{vT1}, v{vT3}")
    A(f"s_lshl_b32 s{sT}, s{sT2}, 1")
    A(f"s_add_u32 s{sT}, s{sT}, s{sCH}")
    A(f"s_lshl_b32 s{sT}, s{sT}, 10")
    A(f"s_add_u32 s{sT}, s{sT}, {WS_Q:#x}")
    A(f"buffer_store_dwordx4 {r4(vACC)}, v{vT0}, {srd(sWS)}, s{sT} offen sc1")
    stamp(2)
    if opts.get('wqonly'): A("s_branch L_stream")
    A("s_waitcnt lgkmcnt(0)")
    A(f"s_add_u32 s{sTAG}, s{sE}, {TAGK:#x}")
    A(f"s_xor_b32 s{sTAG+1}, s{sTAG}, {TAGX:#x}")
    A(f"v_mov_b32 v{vT4}, s{sTAG}")
    A(f"v_mov_b32 v{vT5}, s{sTAG+1}")
    A(f"s_lshl_b32 s{sT}, s{sG}, 1")
    A(f"s_add_u32 s{sT}, s{sT}, s{sCH}")
    A(f"s_lshl_b32 s{sT}, s{sT}, 7")
    A(f"s_add_u32 s{sT}, s{sT}, {WS_FLAG:#x}")
    A(f"s_lshl_b32 s3, s{sJ}, 3")
    A(f"v_mov_b32 v{vT0}, s3")
    A(f"v_lshlrev_b32 v{vT1}, 3, v{vL}")
    A("s_waitcnt vmcnt(0)")
    A("s_mov_b64 exec, 1")
    A(f"buffer_store_dwordx2 {r2(vT4)}, v{vT0}, {srd(sWS)}, s{sT} offen sc1")
    A("s_mov_b64 exec, 0xff")
    A(f"s_mov_b32 s{sCNT}, {SPIN}")
    stamp(3)
    LBL("L_poll0")
    A(f"buffer_load_dwordx2 {r2(vS)}, v{vT1}, {srd(sWS)}, s{sT} offen sc1")
    A("s_waitcnt vmcnt(0)")
    A(f"v_cmp_ne_u64 vcc, s[{sTAG}:{sTAG+1}], {r2(vS)}")
    A("s_cbranch_vccz L_poll0done")
    A(f"s_sub_u32 s{sCNT}, s{sCNT}, 1")
    A("s_cbranch_scc1 L_end")
    A("s_sleep 2")
    A("s_branch L_poll0")
    LBL("L_poll0done")
    A("s_mov_b64 exec, -1")
    stamp(4)
    A(f"v_lshrrev_b32 v{vT0}, 5, v{vL}")
    A(f"v_lshlrev_b32 v{vT0}, 11, v{vT0}")
    A(f"v_and_b32 v{vT1}, 31, v{vL}")
    A(f"v_lshl_add_u32 v{vT0}, v{vT1}, 4, v{vT0}")
    A(f"s_lshl_b32 s{sT}, s{sG}, 14")
    A(f"s_lshl_b32 s3, s{sCH}, 10")
    A(f"s_add_u32 s{sT}, s{sT}, s3")
    A(f"s_lshr_b32 s3, s{sJ}, 2")
    A(f"s_lshl_b32 s3, s3, 9")
    A(f"s_add_u32 s{sT}, s{sT}, s3")
    A(f"s_add_u32 s{sT}, s{sT}, {WS_Q:#x}")
    for i in range(4):
        A(f"buffer_load_dwordx4 {r4(vS+4*i)}, v{vT0}, {srd(sWS)}, s{sT} offen sc1")
        if i < 3: A(f"s_add_u32 s{sT}, s{sT}, 4096")
    A(f"v_lshlrev_b32 v{vT1}, 3, v{vT1}")
    A(f"s_lshl_b32 s3, s{sCH}, 8")
    A(f"v_add_u32 v{vT1}, s3, v{vT1}")
    A("s_waitcnt vmcnt(0)")
    for i in range(4): A(f"v_add_f32 v{vS+i}, v{vS+i}, v{vS+4+i}")
    for i in range(4): A(f"v_add_f32 v{vS+8+i}, v{vS+8+i}, v{vS+12+i}")
    for i in range(4): A(f"v_add_f32 v{vS+i}, v{vS+i}, v{vS+8+i}")
    for i in range(4): A(f"v_mov_b32 v{vS+4+i}, v{vS+i}")
    A("s_nop 1")
    for i in range(4): A(f"v_permlane32_swap_b32 v{vS+i}, v{vS+4+i}")
    for i in range(4): A(f"v_add_f32 v{vS+i}, v{vS+i}, v{vS+4+i}")
    A(f"v_cvt_pk_bf16_f32 v{vS+8}, v{vS}, v{vS+1}")
    A(f"v_cvt_pk_bf16_f32 v{vS+9}, v{vS+2}, v{vS+3}")
    A(f"ds_write_b64 v{vT1}, {r2(vS+8)} offset:{L_Q}")
    A(f"s_lshl_b32 s3, s{sCH}, 3")
    A(f"v_mov_b32 v{vT0}, s3")
    A("s_waitcnt lgkmcnt(0)")
    A("s_mov_b64 exec, 1")
    A(f"ds_write_b64 v{vT0}, {r2(vT4)} offset:{L_QF}")
    A("s_mov_b64 exec, -1")
    if opts.get('prio'): A("s_setprio 0")
    stamp(5)

    A("s_branch L_stream")
    LBL("L_stream0")
    A("s_barrier")
    LBL("L_stream")
    issued = []
    cur = {"so": None}
    def soff(m):
        if cur["so"] != m:
            A(f"s_add_u32 s{sT}, s{sSL}, {m*16384}")
            cur["so"] = m
    def ldK(n):
        soff(n >> 2)
        A(f"buffer_load_dwordx4 {r4(kslot(n))}, v{vKO}, {srd(sK)}, s{sT} offen offset:{(n&3)*1024} nt")
        issued.append(("K", n))
    def ldV(n):
        soff(n >> 2)
        A(f"buffer_load_dwordx4 {r4(vslot(n))}, v{vVO}, {srd(sV)}, s{sT} offen offset:{(n&3)*1024} nt")
        issued.append(("V", n))
    vWOO = vT3
    def ldW(n):
        if n % 3 == 0 and n:
            A(f"s_add_u32 s{sT2}, s{sT2}, {3*1152}")
        A(f"buffer_load_dwordx4 {r4(wslot(n))}, v{vWOO}, {srd(sWO)}, s{sT2} offen offset:{(n%3)*1152} nt")
        issued.append(("W", n))
    def wait(op):
        k = len(issued) - 1 - issued.index(op)
        A(f"s_waitcnt vmcnt({k})")
    for n in range(32): ldK(n)
    cur["so"] = None
    for n in range(NVP): ldV(n)
    stamp(6)
    A(f"v_and_b32 v{vT0}, 15, v{vL}")
    A(f"v_lshrrev_b32 v{vT1}, 4, v{vL}")
    A(f"v_mul_u32_u24 v{vWOO}, {16*1152}, v{vT1}")
    A(f"v_lshl_add_u32 v{vWOO}, v{vT0}, 4, v{vWOO}")
    A(f"v_cmp_lt_u32 vcc, 8, v{vT0}")
    A(f"v_bfrev_b32 v{vT0}, 1")
    A(f"s_lshl_b32 s{sT2}, s{sH}, 2")
    A(f"v_cndmask_b32 v{vWOO}, v{vWOO}, v{vT0}, vcc")
    A(f"s_and_b32 s3, s{sW}, 3")
    A(f"s_add_u32 s{sT2}, s{sT2}, s3")
    A(f"s_mul_i32 s{sT2}, s{sT2}, {64*1152}")
    A(f"s_mul_i32 s3, s{sJ}, 144")
    A(f"s_add_u32 s{sT2}, s{sT2}, s3")
    A(f"v_bfe_u32 v{vT0}, v{vL}, 3, 1")
    A(f"v_lshlrev_b32 v{vT0}, 8, v{vT0}")
    A(f"v_lshl_add_u32 v{vT0}, v{vT1}, 6, v{vT0}")
    A(f"v_and_b32 v{vT1}, 3, v{vL}")
    A(f"v_lshl_add_u32 v{vT0}, v{vT1}, 4, v{vT0}")
    A(f"v_mov_b32 v{vT1}, 0")
    A("s_waitcnt lgkmcnt(0)")
    A(f"s_add_u32 s{sTAG}, s{sE}, {TAGK:#x}")
    A(f"s_xor_b32 s{sTAG+1}, s{sTAG}, {TAGX:#x}")
    A(f"s_mov_b32 s{sCNT}, {SPIN}")
    if opts.get('nocomm') or opts.get('wqonly'): A("s_branch L_qready")
    LBL("L_qwait")
    A(f"ds_read_b128 {r4(vA0)}, v{vT1} offset:{L_QF}")
    A("s_waitcnt lgkmcnt(0)")
    A(f"v_cmp_ne_u64 vcc, s[{sTAG}:{sTAG+1}], {r2(vA0)}")
    A(f"v_cmp_ne_u64 s[{sEX}:{sEX+1}], s[{sTAG}:{sTAG+1}], {r2(vA0+2)}")
    A(f"s_or_b64 vcc, vcc, s[{sEX}:{sEX+1}]")
    A("s_cbranch_vccz L_qready")
    A(f"s_sub_u32 s{sCNT}, s{sCNT}, 1")
    A("s_cbranch_scc1 L_end")
    A("s_sleep 4")
    A("s_branch L_qwait")
    LBL("L_qready")
    A(f"ds_read_b128 {r4(vQ)}, v{vT0} offset:{L_Q}")
    stamp(7)
    A("s_waitcnt lgkmcnt(0)")
    def qk_mfma(b):
        wait(("K", 4 * b + 3))
        for i in range(4):
            n = 4 * b + i
            A(f"v_mfma_f32_16x16x32_bf16 {r4(kslot(n))}, {r4(kslot(n))}, {r4(vQ)}, 0")
    def qk_red(b):
        t = b >> 1; x = b & 1
        bm = 0x5 if x == 0 else 0xa
        for c in range(4):
            for i in range(4):
                n = 4 * b + i; d = vS + 4 * t + i
                if c == 0:
                    A(f"v_mov_b32_dpp v{d}, v{kslot(n)} quad_perm:[0,0,0,0] row_mask:0xf bank_mask:{bm:#x}")
                else:
                    A(f"v_add_f32_dpp v{d}, v{kslot(n)+c}, v{d} quad_perm:[{c},{c},{c},{c}] row_mask:0xf bank_mask:{bm:#x}")
    refill = [("V", n) for n in range(NVP, 32)] + ([] if opts.get('nowld') else [("W", n) for n in range(16)])
    qk_mfma(0)
    for b in range(8):
        if b + 1 < 8: qk_mfma(b + 1)
        else: A("s_nop 7")
        if b == 0: A("s_nop 3")
        qk_red(b)
        for kind, n in refill[4 * b: 4 * b + 4]:
            (ldV if kind == "V" else ldW)(n)
    A(f"v_max3_f32 v{vT0}, v{vS}, v{vS+1}, v{vS+2}")
    A(f"v_max3_f32 v{vT1}, v{vS+3}, v{vS+4}, v{vS+5}")
    A(f"v_max3_f32 v{vT2}, v{vS+6}, v{vS+7}, v{vS+8}")
    A(f"v_max3_f32 v{vT0}, v{vT0}, v{vS+9}, v{vS+10}")
    A(f"v_max3_f32 v{vT1}, v{vT1}, v{vS+11}, v{vS+12}")
    A(f"v_max3_f32 v{vT2}, v{vT2}, v{vS+13}, v{vS+14}")
    A(f"v_max3_f32 v{vT0}, v{vT0}, v{vT1}, v{vS+15}")
    A(f"v_max_f32 v{vM}, v{vT0}, v{vT2}")
    def allred(v, t, op):
        A("s_nop 1")
        A(f"{op}_dpp v{v}, v{v}, v{v} row_half_mirror row_mask:0xf bank_mask:0xf")
        A(f"v_mov_b32 v{t}, v{v}")
        A("s_nop 1")
        A(f"v_permlane16_swap_b32 v{v}, v{t}")
        A(f"{op} v{v}, v{v}, v{t}")
        A(f"v_mov_b32 v{t}, v{v}")
        A("s_nop 1")
        A(f"v_permlane32_swap_b32 v{v}, v{t}")
        A(f"{op} v{v}, v{v}, v{t}")
    allred(vM, vT0, "v_max_f32")
    A(f"v_mul_f32 v{vM}, s{sC}, v{vM}")
    for k in range(16): A(f"v_fma_f32 v{vS+k}, v{vS+k}, s{sC}, -v{vM}")
    for k in range(16): A(f"v_exp_f32 v{vS+k}, v{vS+k}")
    A(f"v_add_f32 v{vLS}, v{vS}, v{vS+1}")
    A(f"v_add_f32 v{vT0}, v{vS+2}, v{vS+3}")
    for k in range(4, 16, 2):
        A(f"v_add_f32 v{vLS}, v{vLS}, v{vS+k}")
        A(f"v_add_f32 v{vT0}, v{vT0}, v{vS+k+1}")
    A(f"v_add_f32 v{vLS}, v{vLS}, v{vT0}")
    for k in range(16): A(f"v_cvt_pk_bf16_f32 v{vS+k}, v{vS+k}, v{vS+k}")
    allred(vLS, vT0, "v_add_f32")
    A(f"v_lshlrev_b32 v{vT0}, 3, v{vL}")
    A(f"s_lshl_b32 s3, s{sW}, 3")
    A(f"v_add_u32 v{vT0}, s3, v{vT0}")
    A("s_mov_b64 exec, 0x101")
    A(f"ds_write_b64 v{vT0}, {r2(vM)} offset:{L_ST}")
    A("s_mov_b64 exec, -1")
    stamp(8, True)
    def onehot(dst, src, x):
        for w in range(4):
            if (w >> 1) == x:
                A(f"v_and_b32 v{dst+w}, v{src}, v{vMK+w}")
            else:
                sh = "row_shr:4" if x == 0 else "row_shl:4"
                A(f"v_and_b32_dpp v{dst+w}, v{src}, v{vMK+w} {sh} row_mask:0xf bank_mask:0xf bound_ctrl:0")
    def pv_a(n): onehot(Ab[n & 1], vS + 4 * (n >> 3) + (n & 3), (n >> 2) & 1)
    pv_a(0)
    for n in range(32):
        if n + 1 < 32: pv_a(n + 1)
        wait(("V", n))
        A(f"v_mfma_f32_16x16x32_bf16 {r4(vACC)}, {r4(Ab[n&1])}, {r4(vslot(n))}, {'0' if n == 0 else r4(vACC)}")
    A(f"v_lshrrev_b32 v{vT0}, 5, v{vL}")
    A(f"v_lshlrev_b32 v{vT0}, 9, v{vT0}")
    A(f"v_and_b32 v{vT1}, 15, v{vL}")
    A(f"v_lshl_add_u32 v{vT0}, v{vT1}, 5, v{vT0}")
    A(f"v_bfe_u32 v{vT1}, v{vL}, 4, 1")
    A(f"v_lshl_add_u32 v{vT0}, v{vT1}, 4, v{vT0}")
    A(f"s_lshl_b32 s3, s{sW}, 10")
    A(f"v_add_u32 v{vT0}, s3, v{vT0}")
    A(f"ds_write_b128 v{vT0}, {r4(vACC)} offset:{L_ACC}")
    stamp(9, True)
    if opts.get('nocomm') or opts.get('wqonly'): A("s_branch L_nochk")
    A(f"s_cmp_eq_u32 s{sW}, 1")
    A("s_cbranch_scc0 L_nochk")
    A(f"s_cmp_lt_u32 s{sH}, 9")
    A("s_cbranch_scc0 L_nochk")
    A(f"v_lshlrev_b32 v{vT1}, 8, v{vL}")
    A(f"s_lshl_b32 s{sT}, s{sP}, 12")
    A(f"s_lshl_b32 s3, s{sJ}, 3")
    A(f"s_add_u32 s{sT}, s{sT}, s3")
    A(f"s_add_u32 s{sT}, s{sT}, {WS_FLAG + 128:#x}")
    A("s_mov_b64 exec, 0xffff")
    A(f"s_mov_b32 s{sCNT}, {SPIN}")
    LBL("L_poll2c")
    A(f"buffer_load_dwordx2 {r2(vS)}, v{vT1}, {srd(sWS)}, s{sT} offen sc1")
    A("s_waitcnt vmcnt(0)")
    A(f"v_cmp_ne_u64 vcc, s[{sTAG}:{sTAG+1}], {r2(vS)}")
    A("s_cbranch_vccz L_poll2cdone")
    A(f"s_sub_u32 s{sCNT}, s{sCNT}, 1")
    A("s_cbranch_scc1 L_end")
    A("s_sleep 2")
    A("s_branch L_poll2c")
    LBL("L_poll2cdone")
    A("s_mov_b64 exec, -1")
    LBL("L_nochk")
    A("s_waitcnt lgkmcnt(0)")
    A("s_barrier")
    stamp(10, True)
    if opts.get('nocomm') or opts.get('wqonly'):
        A("s_waitcnt vmcnt(0)")
        stamp(11)
        A("s_branch L_end")
    A(f"s_cmp_ge_u32 s{sW}, 4")
    A("s_cbranch_scc1 L_late")
    A(f"s_cmp_ge_u32 s{sW}, 2")
    A("s_cbranch_scc1 L_end")
    A(f"s_cmp_eq_u32 s{sW}, 1")
    A("s_cbranch_scc1 L_br")
    vST = vS
    vAC = vVP
    A(f"v_lshrrev_b32 v{vT0}, 5, v{vL}")
    A(f"v_lshlrev_b32 v{vT0}, 6, v{vT0}")
    for i in range(4): A(f"ds_read_b128 {r4(vST+4*i)}, v{vT0} offset:{L_ST+16*i}")
    for w in range(8): A(f"ds_read_b128 {r4(vAC+4*w)}, v{vVO} offset:{L_ACC+1024*w}")
    A(f"s_lshl_b32 s{sT}, s{sG}, 3")
    A(f"s_add_u32 s{sT}, s{sT}, s{sJ}")
    A(f"s_mul_i32 s{sT}, s{sT}, {O_STR}")
    A(f"s_add_u32 s{sT}, s{sT}, {WS_O:#x}")
    A(f"v_lshrrev_b32 v{vT1}, 3, v{vT0}")
    A("s_waitcnt lgkmcnt(8)")
    A(f"v_max3_f32 v{vM}, v{vST}, v{vST+2}, v{vST+4}")
    A(f"v_max3_f32 v{vM}, v{vM}, v{vST+6}, v{vST+8}")
    A(f"v_max3_f32 v{vM}, v{vM}, v{vST+10}, v{vST+12}")
    A(f"v_max_f32 v{vM}, v{vM}, v{vST+14}")
    for w in range(8): A(f"v_sub_f32 v{vST+2*w}, v{vST+2*w}, v{vM}")
    for w in range(8): A(f"v_exp_f32 v{vST+2*w}, v{vST+2*w}")
    A(f"v_mul_f32 v{vLS}, v{vST}, v{vST+1}")
    for w in range(1, 8): A(f"v_fmac_f32 v{vLS}, v{vST+2*w}, v{vST+2*w+1}")
    for w in range(8):
        A(f"s_waitcnt lgkmcnt({7-w})")
        for i in range(4):
            if w == 0: A(f"v_mul_f32 v{vACC+i}, v{vST}, v{vAC+i}")
            else: A(f"v_fmac_f32 v{vACC+i}, v{vST+2*w}, v{vAC+4*w+i}")
    for i in range(4): A(f"v_min_u32 v{vACC+i}, -2, v{vACC+i}")
    A(f"buffer_store_dwordx4 {r4(vACC)}, v{vVO}, {srd(sWS)}, s{sT} offen sc1")
    A(f"v_min_u32 v{vM}, -2, v{vM}")
    A(f"v_min_u32 v{vLS}, -2, v{vLS}")
    A(f"s_mov_b32 exec_lo, 1")
    A(f"s_mov_b32 exec_hi, 1")
    A(f"buffer_store_dwordx2 {r2(vM)}, v{vT1}, {srd(sWS)}, s{sT} offen offset:1024 sc1")
    A("s_mov_b64 exec, -1")
    stamp(11, True)
    A("s_branch L_br")

    LBL("L_late")
    vF = vS
    vMS = vS + 8
    A(f"v_bfe_u32 v{vT0}, v{vL}, 3, 1")
    A(f"v_and_b32 v{vT1}, 3, v{vL}")
    A(f"v_lshl_add_u32 v{vT0}, v{vT0}, 2, v{vT1}")
    A(f"v_mul_u32_u24 v{vT0}, {O_STR}, v{vT0}")
    A(f"v_lshrrev_b32 v{vT1}, 4, v{vL}")
    A(f"v_lshl_add_u32 v{vT1}, v{vT1}, 6, v{vT0}")
    A(f"v_bfe_u32 v{vT2}, v{vL}, 2, 1")
    A(f"v_lshl_add_u32 v{vT1}, v{vT2}, 5, v{vT1}")
    A(f"s_mul_i32 s{sT}, s{sG}, {8*O_STR}")
    A(f"s_add_u32 s{sT}, s{sT}, {WS_O:#x}")
    A(f"s_and_b32 s3, s{sW}, 3")
    A(f"s_lshl_b32 s{sT2}, s3, 8")
    A(f"s_add_u32 s{sT2}, s{sT2}, s{sT}")
    A(f"s_lshr_b32 s3, s3, 1")
    A(f"s_lshl_b32 s3, s3, 3")
    A(f"s_add_u32 s{sT}, s{sT}, s3")
    A(f"s_mov_b32 s{sCNT}, {SPIN}")
    LBL("L_poll1")
    A(f"buffer_load_dwordx2 {r2(vMS)}, v{vT0}, {srd(sWS)}, s{sT} offen offset:1024 sc1")
    A(f"buffer_load_dwordx4 {r4(vF)}, v{vT1}, {srd(sWS)}, s{sT2} offen sc1")
    A(f"buffer_load_dwordx4 {r4(vF+4)}, v{vT1}, {srd(sWS)}, s{sT2} offen offset:16 sc1")
    A("s_waitcnt vmcnt(0)")
    A(f"v_max3_u32 v{vT2}, v{vMS}, v{vMS+1}, v{vF}")
    A(f"v_max3_u32 v{vT3}, v{vF+1}, v{vF+2}, v{vF+3}")
    A(f"v_max3_u32 v{vT2}, v{vT2}, v{vF+4}, v{vF+5}")
    A(f"v_max3_u32 v{vT3}, v{vT3}, v{vF+6}, v{vF+7}")
    A(f"v_max_u32 v{vT2}, v{vT2}, v{vT3}")
    A(f"v_cmp_eq_u32 vcc, -1, v{vT2}")
    A("s_cbranch_vccz L_poll1done")
    A(f"s_sub_u32 s{sCNT}, s{sCNT}, 1")
    A("s_cbranch_scc1 L_end")
    A("s_sleep 1")
    A("s_branch L_poll1")
    LBL("L_poll1done")
    stamp(11, True)
    X1 = "quad_perm:[1,0,3,2] row_mask:0xf bank_mask:0xf"
    X2 = "quad_perm:[2,3,0,1] row_mask:0xf bank_mask:0xf"
    A(f"v_max_f32_dpp v{vT2}, v{vMS}, v{vMS} {X1}")
    A("s_nop 1")
    A(f"v_max_f32_dpp v{vT2}, v{vT2}, v{vT2} {X2}")
    A(f"v_sub_f32 v{vT2}, v{vMS}, v{vT2}")
    A(f"v_exp_f32 v{vT2}, v{vT2}")
    A("s_nop 0")
    A(f"v_mul_f32 v{vT3}, v{vT2}, v{vMS+1}")
    A("s_nop 1")
    A(f"v_add_f32_dpp v{vT3}, v{vT3}, v{vT3} {X1}")
    A("s_nop 1")
    A(f"v_add_f32_dpp v{vT3}, v{vT3}, v{vT3} {X2}")
    A(f"v_rcp_f32 v{vT3}, v{vT3}")
    A("s_nop 0")
    A(f"v_mul_f32 v{vT2}, v{vT2}, v{vT3}")
    for i in range(8): A(f"v_mul_f32 v{vF+i}, v{vT2}, v{vF+i}")
    for i in range(8): A(f"v_add_f32_dpp v{vF+i}, v{vF+i}, v{vF+i} {X1}")
    for i in range(8): A(f"v_add_f32_dpp v{vF+i}, v{vF+i}, v{vF+i} {X2}")
    for i in range(8): A(f"v_cvt_pk_bf16_f32 v{vF+i}, v{vF+i}, v{vF+i}")
    def op_a(n): onehot(Ab[n & 1], vF + (n & 7), n >> 3)
    op_a(0)
    for n in range(16):
        if n + 1 < 16: op_a(n + 1)
        A(f"v_mfma_f32_16x16x32_bf16 {r4(vACC)}, {r4(Ab[n&1])}, {r4(wslot(n))}, {'0' if n == 0 else r4(vACC)}")
    A(f"v_lshrrev_b32 v{vT0}, 5, v{vL}")
    A(f"v_mul_u32_u24 v{vT0}, {18*16}, v{vT0}")
    A(f"v_and_b32 v{vT1}, 15, v{vL}")
    A(f"v_lshl_add_u32 v{vT0}, v{vT1}, 5, v{vT0}")
    A(f"v_bfe_u32 v{vT1}, v{vL}, 4, 1")
    A(f"v_lshl_add_u32 v{vT0}, v{vT1}, 4, v{vT0}")
    A(f"s_and_b32 s3, s{sW}, 3")
    A(f"s_lshl_b32 s3, s3, 10")
    A(f"v_add_u32 v{vT0}, s3, v{vT0}")
    A("s_mov_b32 exec_lo, 0x01ff01ff")
    A("s_mov_b32 exec_hi, 0x01ff01ff")
    A(f"ds_write_b128 v{vT0}, {r4(vACC)} offset:{L_OUT}")
    A("s_waitcnt lgkmcnt(0)")
    A("s_barrier")
    stamp(12)
    A("s_branch L_end")

    LBL("L_br")
    A("s_barrier")
    stamp(12)
    A(f"s_lshl_b32 s{sT}, s{sP}, 3")
    A(f"s_add_u32 s{sT}, s{sT}, s{sJ}")
    A(f"s_mul_i32 s{sT}, s{sT}, {16*R_STR}")
    A(f"s_add_u32 s{sT}, s{sT}, {WS_R:#x}")
    A(f"s_cmp_eq_u32 s{sW}, 1")
    A("s_cbranch_scc1 L_final")
    A("s_mov_b32 exec_hi, 0xf")
    for w in range(4): A(f"ds_read_b128 {r4(vS+4*w)}, v{vVO} offset:{L_OUT+1024*w}")
    A(f"s_mul_i32 s3, s{sH}, {R_STR}")
    A(f"s_add_u32 s{sT}, s{sT}, s3")
    A("s_waitcnt lgkmcnt(2)")
    for i in range(4): A(f"v_add_f32 v{vS+i}, v{vS+i}, v{vS+4+i}")
    A("s_waitcnt lgkmcnt(0)")
    for i in range(4): A(f"v_add_f32 v{vS+8+i}, v{vS+8+i}, v{vS+12+i}")
    for i in range(4): A(f"v_add_f32 v{vS+i}, v{vS+i}, v{vS+8+i}")
    for i in range(4): A(f"v_min_u32 v{vS+i}, -2, v{vS+i}")
    A(f"buffer_store_dwordx4 {r4(vS)}, v{vVO}, {srd(sWS)}, s{sT} offen sc1")
    stamp(13)
    A("s_branch L_end")

    LBL("L_final")
    A(f"s_cmp_lt_u32 s{sH}, 9")
    A("s_cbranch_scc0 L_end")
    A(f"v_lshrrev_b32 v{vT0}, 2, v{vL}")
    A(f"v_mul_u32_u24 v{vT0}, {R_STR}, v{vT0}")
    A(f"v_and_b32 v{vT1}, 3, v{vL}")
    A(f"v_lshl_add_u32 v{vT0}, v{vT1}, 4, v{vT0}")
    A(f"s_lshl_b32 s3, s{sH}, 6")
    A(f"s_add_u32 s{sT}, s{sT}, s3")
    A(f"s_lshl_b32 s3, s{sH}, 2")
    A(f"v_add_u32 v{vT1}, s3, v{vT1}")
    A(f"v_cmp_lt_u32 vcc, 17, v{vT1}")
    A(f"v_lshlrev_b32 v{vT1}, 3, v{vT1}")
    A(f"v_add_u32 v{vT2}, {2304-144}, v{vT1}")
    A(f"s_mul_i32 s{sT2}, s{sP}, 1152")
    A(f"v_cndmask_b32 v{vT1}, v{vT1}, v{vT2}, vcc")
    A(f"s_mul_i32 s3, s{sJ}, 144")
    A(f"s_add_u32 s{sT2}, s{sT2}, s3")
    A(f"s_mov_b32 s{sCNT}, {SPIN}")
    LBL("L_poll2")
    A(f"buffer_load_dwordx4 {r4(vS)}, v{vT0}, {srd(sWS)}, s{sT} offen sc1")
    A("s_waitcnt vmcnt(0)")
    A(f"v_max3_u32 v{vT2}, v{vS}, v{vS+1}, v{vS+2}")
    A(f"v_max_u32 v{vT2}, v{vT2}, v{vS+3}")
    A(f"v_cmp_eq_u32 vcc, -1, v{vT2}")
    A("s_cbranch_vccz L_poll2done")
    A(f"s_sub_u32 s{sCNT}, s{sCNT}, 1")
    A("s_cbranch_scc1 L_end")
    A("s_sleep 1")
    A("s_branch L_poll2")
    LBL("L_poll2done")
    stamp(13)
    for rot in (4, 8):
        for i in range(4): A(f"v_add_f32_dpp v{vS+i}, v{vS+i}, v{vS+i} row_ror:{rot} row_mask:0xf bank_mask:0xf")
    for sw in ("v_permlane16_swap_b32", "v_permlane32_swap_b32"):
        for i in range(4): A(f"v_mov_b32 v{vS+4+i}, v{vS+i}")
        for i in range(4): A(f"{sw} v{vS+i}, v{vS+4+i}")
        for i in range(4): A(f"v_add_f32 v{vS+i}, v{vS+i}, v{vS+4+i}")
    A(f"v_cvt_pk_bf16_f32 v{vS+4}, v{vS}, v{vS+1}")
    A(f"v_cvt_pk_bf16_f32 v{vS+5}, v{vS+2}, v{vS+3}")
    A("s_mov_b64 exec, 0xf")
    A(f"buffer_store_dwordx2 {r2(vS+4)}, v{vT1}, {srd(sOUT)}, s{sT2} offen")
    A(f"s_or_b32 s3, s{sH}, s{sJ}")
    A("s_cbranch_scc1 L_end")
    A("s_mov_b64 exec, 1")
    A(f"v_mov_b32 v{vT0}, s{sTAG}")
    A(f"s_lshl_b32 s3, s{sP}, 8")
    A(f"v_mov_b32 v{vT1}, s3")
    A(f"buffer_store_dword v{vT0}, v{vT1}, {srd(sWS)}, 0 offen sc1")
    LBL("L_end")
    if stamps:
        A("s_cmp_ge_u32 s2, 256")
        A("s_cbranch_scc1 L_end2")
        stamp(14)
        A("s_getreg_b32 s94, hwreg(HW_REG_XCC_ID)")
        A("s_mov_b32 s95, 0")
        A("s_mov_b64 exec, 1")
        A(f"s_add_u32 s4, s{sWS}, 0x8000000"); A(f"s_addc_u32 s5, s{sWS+1}, 0")
        A(f"s_lshl_b32 s3, s2, 3"); A(f"s_add_u32 s3, s3, s{sW}"); A("s_lshl_b32 s3, s3, 7")
        A("v_mov_b32 v1, s3")
        A("s_waitcnt lgkmcnt(0) vmcnt(0)")
        for i in range(8):
            for k in range(4): A(f"v_mov_b32 v{4+k}, s{64+4*i+k}")
            A(f"global_store_dwordx4 v1, v[4:7], s[4:5] offset:{16*i}")
            A("s_waitcnt vmcnt(0)")
        if opts.get('dbg'):
            A("s_load_dwordx2 s[6:7], s[0:1], 88")
            A("v_mov_b32 v1, 0")
            A("s_waitcnt lgkmcnt(0)")
            for i in range(15):
                A(f"s_sub_u32 s3, s{64+2*i}, s64")
                A("s_cmp_lt_u32 s3, 100000")
                A(f"s_cselect_b32 s3, s{64+2*i}, 0")
                A("v_mov_b32 v2, s3")
                A(f"global_atomic_umax v1, v2, s[6:7] offset:{4*i}")
            A("s_not_b32 s3, s64")
            A("v_mov_b32 v2, s3")
            A("global_atomic_umax v1, v2, s[6:7] offset:60")
        LBL("L_end2")
    A("s_endpgm")
    L.append('.section .rodata,"a"'); L.append(".p2align 6"); L.append(f".amdhsa_kernel {NAME}_kernel")
    L.append("  .amdhsa_next_free_vgpr 256"); L.append(f"  .amdhsa_next_free_sgpr {96 if stamps else 64}"); L.append("  .amdhsa_accum_offset 256")
    L.append("  .amdhsa_group_segment_fixed_size 0"); L.append("  .amdhsa_kernarg_size 104"); L.append("  .amdhsa_user_sgpr_count 2")
    L.append("  .amdhsa_user_sgpr_kernarg_segment_ptr 1"); L.append("  .amdhsa_system_sgpr_workgroup_id_x 1"); L.append(".end_amdhsa_kernel")
    return "\n".join(L) + "\n"

def f2u(f):
    import struct
    return struct.unpack("<I", struct.pack("<f", f))[0]

if __name__ == "__main__":
    open("k1.s", "w").write(gen(False))
    open("k1_st.s", "w").write(gen(True))
    open("k1_st_b0.s", "w").write(gen(True, opts=dict(cbar=0)))
    open("k1_b0.s", "w").write(gen(False, opts=dict(cbar=0)))
    open("k1_st_c.s", "w").write(gen(True, opts=dict(prio=1)))
    open("k1_dbg.s", "w").write(gen(True, opts=dict(dbg=1)))
    open("a_nocomm.s", "w").write(gen(True, opts=dict(nocomm=1)))
    open("a_nocomm_nowo.s", "w").write(gen(True, opts=dict(nocomm=1, nowo=1)))
    open("a_nocomm_nowld.s", "w").write(gen(True, opts=dict(nocomm=1, nowld=1)))
    open("a_wqonly.s", "w").write(gen(True, opts=dict(wqonly=1)))
    open("a_wqonly_nowld.s", "w").write(gen(True, opts=dict(wqonly=1, nowld=1)))
```

```python
import sys, math
NAME = "concat_heads__gqa_block_cached__gqa_block_cached__decode"

WS_E    = 0x0
WS_FLAG = 0x1000
WS_Q    = 0x10000
WS_O    = 0x90000
WS_R    = 0xE0000
WS_SIZE = 0x200000
O_STR = 1152
R_STR = 640
L_Q = 0x000; L_QF = 0x200; L_ST = 0x240; L_ACC = 0x400; L_OUT = 0x2400; L_SIZE = 0x3400

TAGK = 0x9E3779B9
TAGX = 0x5BD1E995
SPIN = 1 << 20

def gen(stamps=False, NVP=20, opts=None):
    opts = opts or {}
    L = []
    def A(s): L.append("    " + s)
    def LBL(s): L.append(s + ":")
    def C(s): L.append("    ; " + s)
    nst = [0]
    def stamp(i, late=False):
        if late and opts.get('commonly'): return
        if stamps:
            A(f"s_memrealtime s[{64+2*i}:{65+2*i}]")
    L.append(f"; @launch grid=(256,1,1) block=(512,1,1) lds={L_SIZE}")
    L.append('.amdgcn_target "amdgcn-amd-amdhsa--gfx950"')
    L.append(".text"); L.append(f".globl {NAME}_kernel"); L.append(".p2align 8"); L.append(f".type {NAME}_kernel,@function")
    L.append(f"{NAME}_kernel:")
    sK, sV, sWO, sWQ, sX, sWS, sOUT = 8, 12, 16, 20, 24, 28, 32
    sW, sP, sH, sJ, sG, sSL, sT, sE = 36, 37, 38, 39, 40, 41, 42, 43
    sTAG = 44
    sC = 46; sCNT = 47; sT2 = 48; sT3 = 49; sSELLO = 50; sSELHI = 51; sEX = 52
    sM = 52
    def srd(b): return f"s[{b}:{b+3}]"
    vKO, vVO = 1, 2
    vT0, vT1, vT2, vT3 = 3, 4, 5, 6
    vL = 7
    vQ = 8
    vMK = 12
    vA0 = 16
    vA1 = 20
    vACC = 24
    vM, vLS = 28, 29
    vT4, vT5 = 30, 31
    vS = 32
    vVP = 48
    vKS = 128
    assert vVP + 4 * NVP <= vKS
    def kslot(n): return vKS + 4 * n
    def vslot(n): return vVP + 4 * n if n < NVP else kslot(n - NVP)
    NVR = 32 - NVP
    def wslot(n): return kslot(NVR + n)
    assert NVR + 16 <= 32 and NVR % 4 == 0
    def r4(b): return f"v[{b}:{b+3}]"
    def r2(b): return f"v[{b}:{b+1}]"

    stamp(0)
    if opts.get('pad'): A("s_memrealtime s[60:61]")
    A("s_cmp_ge_u32 s2, 256")
    A("s_cbranch_scc1 L_end")
    A(f"s_lshr_b32 s{sP}, s2, 7")
    A(f"s_mul_i32 s3, s{sP}, 40")
    A(f"s_load_dwordx2 s[{sK}:{sK+1}], s[0:1], s3 offset:8")
    A(f"s_load_dwordx2 s[{sV}:{sV+1}], s[0:1], s3 offset:16")
    A(f"s_load_dwordx2 s[{sWQ}:{sWQ+1}], s[0:1], s3 offset:24")
    A(f"s_load_dwordx2 s[{sX}:{sX+1}], s[0:1], s3 offset:0")
    A(f"s_load_dwordx2 s[{sWS}:{sWS+1}], s[0:1], 96")
    A(f"s_load_dwordx2 s[{sWO}:{sWO+1}], s[0:1], s3 offset:32")
    A(f"s_load_dwordx2 s[{sOUT}:{sOUT+1}], s[0:1], 80")
    A(f"v_lshrrev_b32 v{vT0}, 6, v0")
    A(f"v_and_b32 v{vL}, 63, v0")
    A(f"v_readfirstlane_b32 s{sW}, v{vT0}")
    A(f"s_and_b32 s{sH}, s2, 7")
    A(f"s_bfe_u32 s3, s2, 0x10006")
    A(f"s_lshl_b32 s3, s3, 3")
    A(f"s_add_u32 s{sH}, s{sH}, s3")
    A(f"s_bfe_u32 s{sJ}, s2, 0x30003")
    A(f"s_lshl_b32 s{sG}, s{sP}, 4")
    A(f"s_add_u32 s{sG}, s{sG}, s{sH}")
    A(f"s_lshr_b32 s3, s{sJ}, 2")
    A(f"s_lshl_b32 s{sSL}, s3, 24")
    A(f"s_lshl_b32 s3, s{sH}, 20")
    A(f"s_add_u32 s{sSL}, s{sSL}, s3")
    A(f"s_and_b32 s3, s{sJ}, 3")
    A(f"s_lshl_b32 s3, s3, 18")
    A(f"s_add_u32 s{sSL}, s{sSL}, s3")
    A(f"s_and_b32 s3, s{sW}, 3")
    A(f"s_lshl_b32 s3, s3, 12")
    A(f"s_add_u32 s{sSL}, s{sSL}, s3")
    A(f"s_lshr_b32 s3, s{sW}, 2")
    A(f"s_lshl_b32 s3, s3, 17")
    A(f"s_add_u32 s{sSL}, s{sSL}, s3")
    for b, sz in ((sK, 0x2000000), (sV, 0x2000000), (sWQ, 576*8192), (sX, 2304), (sWS, WS_SIZE), (sOUT, 4608)):
        A(f"s_mov_b32 s{b+2}, {sz:#x}"); A(f"s_mov_b32 s{b+3}, 0x20000")
    A(f"s_cmp_ge_u32 s{sW}, 4")
    A(f"s_cselect_b32 s{sWO+2}, {0 if opts.get('nowo') else 4096*1152:#x}, 0")
    A(f"s_mov_b32 s{sWO+3}, 0x20000")
    A(f"v_lshlrev_b32 v{vVO}, 4, v{vL}")
    A(f"v_and_b32 v{vT0}, 3, v{vL}")
    A(f"v_lshlrev_b32 v{vT0}, 4, v{vT0}")
    A(f"v_bfe_u32 v{vT1}, v{vL}, 2, 2")
    A(f"v_lshlrev_b32 v{vT1}, 8, v{vT1}")
    A(f"v_lshrrev_b32 v{vT2}, 4, v{vL}")
    A(f"v_lshlrev_b32 v{vKO}, 6, v{vT2}")
    A(f"v_add3_u32 v{vKO}, v{vKO}, v{vT0}, v{vT1}")
    A(f"v_and_b32 v{vT0}, 1, v{vL}")
    A(f"v_lshlrev_b32 v{vT0}, 4, v{vT0}")
    A(f"v_mov_b32 v{vT1}, 0xffff")
    A(f"v_lshlrev_b32 v{vT0}, v{vT0}, v{vT1}")
    A(f"v_bfe_u32 v{vT1}, v{vL}, 1, 2")
    for w in range(4): A(f"v_cmp_eq_u32 s[{sM+2*w}:{sM+2*w+1}], {w}, v{vT1}")
    A("s_nop 1")
    for w in range(4): A(f"v_cndmask_b32 v{vMK+w}, 0, v{vT0}, s[{sM+2*w}:{sM+2*w+1}]")
    A(f"s_mov_b32 s{sC}, {f2u(math.log2(math.e)/math.sqrt(128.0)):#x}")
    for i in range(4): A(f"v_mov_b32 v{vA0+i}, 0")
    A("s_mov_b64 exec, 1")
    A(f"ds_write_b128 v{vA0}, {r4(vA0)} offset:{L_QF}")
    A("s_mov_b64 exec, -1")
    A("s_waitcnt lgkmcnt(0)")
    stamp(1)
    A(f"s_lshl_b32 s3, s{sP}, 8")
    A(f"s_load_dword s{sE}, s[{sWS}:{sWS+1}], s3")
    if opts.get('nocomm'): A("s_branch L_stream")
    A(f"s_cmp_ge_u32 s{sW}, 2")
    A("s_cbranch_scc1 L_stream0")

    C("---- q projection: wave 6+c handles head c of the pair, rows 72j..72j+71 ----")
    if opts.get('prio'): A("s_setprio 3")
    sCH = sT3
    A(f"s_mov_b32 s{sCH}, s{sW}")
    vX = vVP
    vWQO = vT4
    A(f"v_bfe_u32 v{vT0}, v{vL}, 3, 1")
    A(f"v_mul_u32_u24 v{vT0}, 1152, v{vT0}")
    A(f"v_mad_u32_u24 v{vT0}, v{vT2}, 36, v{vT0}")
    A(f"s_mul_i32 s{sT}, s{sJ}, 144")
    A(f"buffer_load_dwordx4 {r4(vX)}, v{vT0}, {srd(sX)}, s{sT} offen")
    A(f"buffer_load_dwordx4 {r4(vX+4)}, v{vT0}, {srd(sX)}, s{sT} offen offset:16")
    A(f"buffer_load_dword v{vX+8}, v{vT0}, {srd(sX)}, s{sT} offen offset:32")
    A(f"v_and_b32 v{vT1}, 15, v{vL}")
    A(f"v_lshlrev_b32 v{vT1}, 4, v{vT1}")
    A(f"v_mul_u32_u24 v{vWQO}, {18*8192}, v{vT2}")
    A(f"v_add_u32 v{vWQO}, v{vWQO}, v{vT1}")
    A(f"s_mul_i32 s{sT}, s{sJ}, {72*8192}")
    A(f"s_lshl_b32 s3, s{sH}, 9")
    A(f"s_add_u32 s{sT}, s{sT}, s3")
    A(f"s_lshl_b32 s3, s{sCH}, 8")
    A(f"s_add_u32 s{sT}, s{sT}, s3")
    for n in range(18):
        A(f"buffer_load_dwordx4 {r4(kslot(n))}, v{vWQO}, {srd(sWQ)}, s{sT} offen {opts.get('wqflags','nt')}")
        if n < 17: A(f"s_add_u32 s{sT}, s{sT}, 8192")
        if n == opts.get('cbar', 17): A("s_barrier")
    opts.get("commonly") and stamp(8)
    vSENT = vS
    for i in range(4): A(f"v_mov_b32 v{vSENT+i}, -1")
    A(f"s_lshl_b32 s{sT2}, s{sG}, 3")
    A(f"s_add_u32 s{sT2}, s{sT2}, s{sJ}")
    A(f"s_cmp_eq_u32 s{sCH}, 0")
    A("s_cbranch_scc0 L_clrR")
    A(f"s_mul_i32 s{sT}, s{sT2}, {O_STR}")
    A(f"s_add_u32 s{sT}, s{sT}, {WS_O:#x}")
    A(f"buffer_store_dwordx4 {r4(vSENT)}, v{vVO}, {srd(sWS)}, s{sT} offen sc1")
    A(f"s_mov_b64 exec, 1")
    A(f"buffer_store_dwordx4 {r4(vSENT)}, v{vVO}, {srd(sWS)}, s{sT} offen offset:1024 sc1")
    A(f"s_branch L_clrdone")
    LBL("L_clrR")
    A(f"s_lshl_b32 s{sT}, s{sP}, 3")
    A(f"s_add_u32 s{sT}, s{sT}, s{sJ}")
    A(f"s_lshl_b32 s{sT}, s{sT}, 4")
    A(f"s_add_u32 s{sT}, s{sT}, s{sH}")
    A(f"s_mul_i32 s{sT}, s{sT}, {R_STR}")
    A(f"s_add_u32 s{sT}, s{sT}, {WS_R:#x}")
    A("s_mov_b32 exec_hi, 0xf")
    A(f"buffer_store_dwordx4 {r4(vSENT)}, v{vVO}, {srd(sWS)}, s{sT} offen sc1")
    A(f"s_mov_b64 exec, 1")
    A(f"buffer_store_dwordx4 {r4(vSENT)}, v{vVO}, {srd(sWS)}, s{sT} offen sc1")
    LBL("L_clrdone")
    A("s_mov_b64 exec, -1")
    A(f"s_mov_b32 s{sSELLO}, 0x01000100")
    A(f"s_mov_b32 s{sSELHI}, 0x03020302")
    Ab = [vA0, vA1]
    def xop(n):
        a = Ab[n & 1]
        A(f"v_perm_b32 v{vT0}, v{vX + (n>>1)}, v{vX + (n>>1)}, s{sSELHI if n & 1 else sSELLO}")
        for w in range(4): A(f"v_and_b32 v{a+w}, v{vT0}, v{vMK+w}")
    A("s_waitcnt vmcnt(20)")
    opts.get("commonly") and stamp(9)
    xop(0)
    for n in range(18):
        if n + 1 < 18: xop(n + 1)
        else: A("s_nop 1")
        A(f"s_waitcnt vmcnt({17 - n + 2})")
        if n == 0: opts.get("commonly") and stamp(10)
        if n == 9: opts.get("commonly") and stamp(11)
        A(f"v_mfma_f32_16x16x32_bf16 {r4(vACC)}, {r4(Ab[n&1])}, {r4(kslot(n))}, {'0' if n == 0 else r4(vACC)}")
    A(f"v_lshrrev_b32 v{vT0}, 5, v{vL}")
    A(f"v_lshlrev_b32 v{vT0}, 9, v{vT0}")
    A(f"v_and_b32 v{vT1}, 15, v{vL}")
    A(f"v_lshlrev_b32 v{vT1}, 5, v{vT1}")
    A(f"v_bfe_u32 v{vT3}, v{vL}, 4, 1")
    A(f"v_lshlrev_b32 v{vT3}, 4, v{vT3}")
    A(f"v_add3_u32 v{vT0}, v{vT0}, v{vT1}, v{vT3}")
    A(f"s_lshl_b32 s{sT}, s{sT2}, 1")
    A(f"s_add_u32 s{sT}, s{sT}, s{sCH}")
    A(f"s_lshl_b32 s{sT}, s{sT}, 10")
    A(f"s_add_u32 s{sT}, s{sT}, {WS_Q:#x}")
    A(f"buffer_store_dwordx4 {r4(vACC)}, v{vT0}, {srd(sWS)}, s{sT} offen sc1")
    stamp(2)
    if opts.get('wqonly'): A("s_branch L_stream")
    A("s_waitcnt lgkmcnt(0)")
    A(f"s_add_u32 s{sTAG}, s{sE}, {TAGK:#x}")
    A(f"s_xor_b32 s{sTAG+1}, s{sTAG}, {TAGX:#x}")
    A(f"v_mov_b32 v{vT4}, s{sTAG}")
    A(f"v_mov_b32 v{vT5}, s{sTAG+1}")
    A(f"s_lshl_b32 s{sT}, s{sG}, 1")
    A(f"s_add_u32 s{sT}, s{sT}, s{sCH}")
    A(f"s_lshl_b32 s{sT}, s{sT}, 7")
    A(f"s_add_u32 s{sT}, s{sT}, {WS_FLAG:#x}")
    A(f"s_lshl_b32 s3, s{sJ}, 3")
    A(f"v_mov_b32 v{vT0}, s3")
    A(f"v_lshlrev_b32 v{vT1}, 3, v{vL}")
    A("s_waitcnt vmcnt(0)")
    A("s_mov_b64 exec, 1")
    A(f"buffer_store_dwordx2 {r2(vT4)}, v{vT0}, {srd(sWS)}, s{sT} offen sc1")
    A("s_mov_b64 exec, 0xff")
    A(f"s_mov_b32 s{sCNT}, {SPIN}")
    stamp(3)
    LBL("L_poll0")
    A(f"buffer_load_dwordx2 {r2(vS)}, v{vT1}, {srd(sWS)}, s{sT} offen sc1")
    A("s_waitcnt vmcnt(0)")
    A(f"v_cmp_ne_u64 vcc, s[{sTAG}:{sTAG+1}], {r2(vS)}")
    A("s_cbranch_vccz L_poll0done")
    A(f"s_sub_u32 s{sCNT}, s{sCNT}, 1")
    A("s_cbranch_scc1 L_end")
    A("s_sleep 2")
    A("s_branch L_poll0")
    LBL("L_poll0done")
    A("s_mov_b64 exec, -1")
    stamp(4)
    A(f"v_lshrrev_b32 v{vT0}, 5, v{vL}")
    A(f"v_lshlrev_b32 v{vT0}, 11, v{vT0}")
    A(f"v_and_b32 v{vT1}, 31, v{vL}")
    A(f"v_lshl_add_u32 v{vT0}, v{vT1}, 4, v{vT0}")
    A(f"s_lshl_b32 s{sT}, s{sG}, 14")
    A(f"s_lshl_b32 s3, s{sCH}, 10")
    A(f"s_add_u32 s{sT}, s{sT}, s3")
    A(f"s_lshr_b32 s3, s{sJ}, 2")
    A(f"s_lshl_b32 s3, s3, 9")
    A(f"s_add_u32 s{sT}, s{sT}, s3")
    A(f"s_add_u32 s{sT}, s{sT}, {WS_Q:#x}")
    for i in range(4):
        A(f"buffer_load_dwordx4 {r4(vS+4*i)}, v{vT0}, {srd(sWS)}, s{sT} offen sc1")
        if i < 3: A(f"s_add_u32 s{sT}, s{sT}, 4096")
    A(f"v_lshlrev_b32 v{vT1}, 3, v{vT1}")
    A(f"s_lshl_b32 s3, s{sCH}, 8")
    A(f"v_add_u32 v{vT1}, s3, v{vT1}")
    A("s_waitcnt vmcnt(0)")
    for i in range(4): A(f"v_add_f32 v{vS+i}, v{vS+i}, v{vS+4+i}")
    for i in range(4): A(f"v_add_f32 v{vS+8+i}, v{vS+8+i}, v{vS+12+i}")
    for i in range(4): A(f"v_add_f32 v{vS+i}, v{vS+i}, v{vS+8+i}")
    for i in range(4): A(f"v_mov_b32 v{vS+4+i}, v{vS+i}")
    A("s_nop 1")
    for i in range(4): A(f"v_permlane32_swap_b32 v{vS+i}, v{vS+4+i}")
    for i in range(4): A(f"v_add_f32 v{vS+i}, v{vS+i}, v{vS+4+i}")
    A(f"v_cvt_pk_bf16_f32 v{vS+8}, v{vS}, v{vS+1}")
    A(f"v_cvt_pk_bf16_f32 v{vS+9}, v{vS+2}, v{vS+3}")
    A(f"ds_write_b64 v{vT1}, {r2(vS+8)} offset:{L_Q}")
    A(f"s_lshl_b32 s3, s{sCH}, 3")
    A(f"v_mov_b32 v{vT0}, s3")
    A("s_waitcnt lgkmcnt(0)")
    A("s_mov_b64 exec, 1")
    A(f"ds_write_b64 v{vT0}, {r2(vT4)} offset:{L_QF}")
    A("s_mov_b64 exec, -1")
    if opts.get('prio'): A("s_setprio 0")
    stamp(5)

    A("s_branch L_stream")
    LBL("L_stream0")
    A("s_barrier")
    LBL("L_stream")
    issued = []
    cur = {"so": None}
    def soff(m):
        if cur["so"] != m:
            A(f"s_add_u32 s{sT}, s{sSL}, {m*16384}")
            cur["so"] = m
    def ldK(n):
        soff(n >> 2)
        A(f"buffer_load_dwordx4 {r4(kslot(n))}, v{vKO}, {srd(sK)}, s{sT} offen offset:{(n&3)*1024} nt")
        issued.append(("K", n))
    def ldV(n):
        soff(n >> 2)
        A(f"buffer_load_dwordx4 {r4(vslot(n))}, v{vVO}, {srd(sV)}, s{sT} offen offset:{(n&3)*1024} nt")
        issued.append(("V", n))
    vWOO = vT3
    def ldW(n):
        if n % 3 == 0 and n:
            A(f"s_add_u32 s{sT2}, s{sT2}, {3*1152}")
        A(f"buffer_load_dwordx4 {r4(wslot(n))}, v{vWOO}, {srd(sWO)}, s{sT2} offen offset:{(n%3)*1152} nt")
        issued.append(("W", n))
    def wait(op):
        k = len(issued) - 1 - issued.index(op)
        A(f"s_waitcnt vmcnt({k})")
    for n in range(32): ldK(n)
    cur["so"] = None
    for n in range(NVP): ldV(n)
    stamp(6)
    A(f"v_and_b32 v{vT0}, 15, v{vL}")
    A(f"v_lshrrev_b32 v{vT1}, 4, v{vL}")
    A(f"v_mul_u32_u24 v{vWOO}, {16*1152}, v{vT1}")
    A(f"v_lshl_add_u32 v{vWOO}, v{vT0}, 4, v{vWOO}")
    A(f"v_cmp_lt_u32 vcc, 8, v{vT0}")
    A(f"v_bfrev_b32 v{vT0}, 1")
    A(f"s_lshl_b32 s{sT2}, s{sH}, 2")
    A(f"v_cndmask_b32 v{vWOO}, v{vWOO}, v{vT0}, vcc")
    A(f"s_and_b32 s3, s{sW}, 3")
    A(f"s_add_u32 s{sT2}, s{sT2}, s3")
    A(f"s_mul_i32 s{sT2}, s{sT2}, {64*1152}")
    A(f"s_mul_i32 s3, s{sJ}, 144")
    A(f"s_add_u32 s{sT2}, s{sT2}, s3")
    A(f"v_bfe_u32 v{vT0}, v{vL}, 3, 1")
    A(f"v_lshlrev_b32 v{vT0}, 8, v{vT0}")
    A(f"v_lshl_add_u32 v{vT0}, v{vT1}, 6, v{vT0}")
    A(f"v_and_b32 v{vT1}, 3, v{vL}")
    A(f"v_lshl_add_u32 v{vT0}, v{vT1}, 4, v{vT0}")
    A(f"v_mov_b32 v{vT1}, 0")
    A("s_waitcnt lgkmcnt(0)")
    A(f"s_add_u32 s{sTAG}, s{sE}, {TAGK:#x}")
    A(f"s_xor_b32 s{sTAG+1}, s{sTAG}, {TAGX:#x}")
    A(f"s_mov_b32 s{sCNT}, {SPIN}")
    if opts.get('nocomm') or opts.get('wqonly'): A("s_branch L_qready")
    LBL("L_qwait")
    A(f"ds_read_b128 {r4(vA0)}, v{vT1} offset:{L_QF}")
    A("s_waitcnt lgkmcnt(0)")
    A(f"v_cmp_ne_u64 vcc, s[{sTAG}:{sTAG+1}], {r2(vA0)}")
    A(f"v_cmp_ne_u64 s[{sEX}:{sEX+1}], s[{sTAG}:{sTAG+1}], {r2(vA0+2)}")
    A(f"s_or_b64 vcc, vcc, s[{sEX}:{sEX+1}]")
    A("s_cbranch_vccz L_qready")
    A(f"s_sub_u32 s{sCNT}, s{sCNT}, 1")
    A("s_cbranch_scc1 L_end")
    A("s_sleep 4")
    A("s_branch L_qwait")
    LBL("L_qready")
    A(f"ds_read_b128 {r4(vQ)}, v{vT0} offset:{L_Q}")
    stamp(7)
    A("s_waitcnt lgkmcnt(0)")
    def qk_mfma(b):
        wait(("K", 4 * b + 3))
        for i in range(4):
            n = 4 * b + i
            A(f"v_mfma_f32_16x16x32_bf16 {r4(kslot(n))}, {r4(kslot(n))}, {r4(vQ)}, 0")
    def qk_red(b):
        t = b >> 1; x = b & 1
        bm = 0x5 if x == 0 else 0xa
        for c in range(4):
            for i in range(4):
                n = 4 * b + i; d = vS + 4 * t + i
                if c == 0:
                    A(f"v_mov_b32_dpp v{d}, v{kslot(n)} quad_perm:[0,0,0,0] row_mask:0xf bank_mask:{bm:#x}")
                else:
                    A(f"v_add_f32_dpp v{d}, v{kslot(n)+c}, v{d} quad_perm:[{c},{c},{c},{c}] row_mask:0xf bank_mask:{bm:#x}")
    refill = [("V", n) for n in range(NVP, 32)] + ([] if opts.get('nowld') else [("W", n) for n in range(16)])
    qk_mfma(0)
    for b in range(8):
        if b + 1 < 8: qk_mfma(b + 1)
        else: A("s_nop 7")
        if b == 0: A("s_nop 3")
        qk_red(b)
        for kind, n in refill[4 * b: 4 * b + 4]:
            (ldV if kind == "V" else ldW)(n)
    A(f"v_max3_f32 v{vT0}, v{vS}, v{vS+1}, v{vS+2}")
    A(f"v_max3_f32 v{vT1}, v{vS+3}, v{vS+4}, v{vS+5}")
    A(f"v_max3_f32 v{vT2}, v{vS+6}, v{vS+7}, v{vS+8}")
    A(f"v_max3_f32 v{vT0}, v{vT0}, v{vS+9}, v{vS+10}")
    A(f"v_max3_f32 v{vT1}, v{vT1}, v{vS+11}, v{vS+12}")
    A(f"v_max3_f32 v{vT2}, v{vT2}, v{vS+13}, v{vS+14}")
    A(f"v_max3_f32 v{vT0}, v{vT0}, v{vT1}, v{vS+15}")
    A(f"v_max_f32 v{vM}, v{vT0}, v{vT2}")
    def allred(v, t, op):
        A("s_nop 1")
        A(f"{op}_dpp v{v}, v{v}, v{v} row_half_mirror row_mask:0xf bank_mask:0xf")
        A(f"v_mov_b32 v{t}, v{v}")
        A("s_nop 1")
        A(f"v_permlane16_swap_b32 v{v}, v{t}")
        A(f"{op} v{v}, v{v}, v{t}")
        A(f"v_mov_b32 v{t}, v{v}")
        A("s_nop 1")
        A(f"v_permlane32_swap_b32 v{v}, v{t}")
        A(f"{op} v{v}, v{v}, v{t}")
    allred(vM, vT0, "v_max_f32")
    A(f"v_mul_f32 v{vM}, s{sC}, v{vM}")
    for k in range(16): A(f"v_fma_f32 v{vS+k}, v{vS+k}, s{sC}, -v{vM}")
    for k in range(16): A(f"v_exp_f32 v{vS+k}, v{vS+k}")
    A(f"v_add_f32 v{vLS}, v{vS}, v{vS+1}")
    A(f"v_add_f32 v{vT0}, v{vS+2}, v{vS+3}")
    for k in range(4, 16, 2):
        A(f"v_add_f32 v{vLS}, v{vLS}, v{vS+k}")
        A(f"v_add_f32 v{vT0}, v{vT0}, v{vS+k+1}")
    A(f"v_add_f32 v{vLS}, v{vLS}, v{vT0}")
    for k in range(16): A(f"v_cvt_pk_bf16_f32 v{vS+k}, v{vS+k}, v{vS+k}")
    allred(vLS, vT0, "v_add_f32")
    A(f"v_lshlrev_b32 v{vT0}, 3, v{vL}")
    A(f"s_lshl_b32 s3, s{sW}, 3")
    A(f"v_add_u32 v{vT0}, s3, v{vT0}")
    A("s_mov_b64 exec, 0x101")
    A(f"ds_write_b64 v{vT0}, {r2(vM)} offset:{L_ST}")
    A("s_mov_b64 exec, -1")
    stamp(8, True)
    def onehot(dst, src, x):
        for w in range(4):
            if (w >> 1) == x:
                A(f"v_and_b32 v{dst+w}, v{src}, v{vMK+w}")
            else:
                sh = "row_shr:4" if x == 0 else "row_shl:4"
                A(f"v_and_b32_dpp v{dst+w}, v{src}, v{vMK+w} {sh} row_mask:0xf bank_mask:0xf bound_ctrl:0")
    def pv_a(n): onehot(Ab[n & 1], vS + 4 * (n >> 3) + (n & 3), (n >> 2) & 1)
    pv_a(0)
    for n in range(32):
        if n + 1 < 32: pv_a(n + 1)
        wait(("V", n))
        A(f"v_mfma_f32_16x16x32_bf16 {r4(vACC)}, {r4(Ab[n&1])}, {r4(vslot(n))}, {'0' if n == 0 else r4(vACC)}")
    A(f"v_lshrrev_b32 v{vT0}, 5, v{vL}")
    A(f"v_lshlrev_b32 v{vT0}, 9, v{vT0}")
    A(f"v_and_b32 v{vT1}, 15, v{vL}")
    A(f"v_lshl_add_u32 v{vT0}, v{vT1}, 5, v{vT0}")
    A(f"v_bfe_u32 v{vT1}, v{vL}, 4, 1")
    A(f"v_lshl_add_u32 v{vT0}, v{vT1}, 4, v{vT0}")
    A(f"s_lshl_b32 s3, s{sW}, 10")
    A(f"v_add_u32 v{vT0}, s3, v{vT0}")
    A(f"ds_write_b128 v{vT0}, {r4(vACC)} offset:{L_ACC}")
    stamp(9, True)
    if opts.get('nocomm') or opts.get('wqonly'): A("s_branch L_nochk")
    A(f"s_cmp_eq_u32 s{sW}, 1")
    A("s_cbranch_scc0 L_nochk")
    A(f"s_cmp_lt_u32 s{sH}, 9")
    A("s_cbranch_scc0 L_nochk")
    A(f"v_lshlrev_b32 v{vT1}, 8, v{vL}")
    A(f"s_lshl_b32 s{sT}, s{sP}, 12")
    A(f"s_lshl_b32 s3, s{sJ}, 3")
    A(f"s_add_u32 s{sT}, s{sT}, s3")
    A(f"s_add_u32 s{sT}, s{sT}, {WS_FLAG + 128:#x}")
    A("s_mov_b64 exec, 0xffff")
    A(f"s_mov_b32 s{sCNT}, {SPIN}")
    LBL("L_poll2c")
    A(f"buffer_load_dwordx2 {r2(vS)}, v{vT1}, {srd(sWS)}, s{sT} offen sc1")
    A("s_waitcnt vmcnt(0)")
    A(f"v_cmp_ne_u64 vcc, s[{sTAG}:{sTAG+1}], {r2(vS)}")
    A("s_cbranch_vccz L_poll2cdone")
    A(f"s_sub_u32 s{sCNT}, s{sCNT}, 1")
    A("s_cbranch_scc1 L_end")
    A("s_sleep 2")
    A("s_branch L_poll2c")
    LBL("L_poll2cdone")
    A("s_mov_b64 exec, -1")
    LBL("L_nochk")
    A("s_waitcnt lgkmcnt(0)")
    A("s_barrier")
    stamp(10, True)
    if opts.get('nocomm') or opts.get('wqonly'):
        A("s_waitcnt vmcnt(0)")
        stamp(11)
        A("s_branch L_end")
    A(f"s_cmp_ge_u32 s{sW}, 4")
    A("s_cbranch_scc1 L_late")
    A(f"s_cmp_ge_u32 s{sW}, 2")
    A("s_cbranch_scc1 L_end")
    A(f"s_cmp_eq_u32 s{sW}, 1")
    A("s_cbranch_scc1 L_br")
    vST = vS
    vAC = vVP
    A(f"v_lshrrev_b32 v{vT0}, 5, v{vL}")
    A(f"v_lshlrev_b32 v{vT0}, 6, v{vT0}")
    for i in range(4): A(f"ds_read_b128 {r4(vST+4*i)}, v{vT0} offset:{L_ST+16*i}")
    for w in range(8): A(f"ds_read_b128 {r4(vAC+4*w)}, v{vVO} offset:{L_ACC+1024*w}")
    A(f"s_lshl_b32 s{sT}, s{sG}, 3")
    A(f"s_add_u32 s{sT}, s{sT}, s{sJ}")
    A(f"s_mul_i32 s{sT}, s{sT}, {O_STR}")
    A(f"s_add_u32 s{sT}, s{sT}, {WS_O:#x}")
    A(f"v_lshrrev_b32 v{vT1}, 3, v{vT0}")
    A("s_waitcnt lgkmcnt(8)")
    A(f"v_max3_f32 v{vM}, v{vST}, v{vST+2}, v{vST+4}")
    A(f"v_max3_f32 v{vM}, v{vM}, v{vST+6}, v{vST+8}")
    A(f"v_max3_f32 v{vM}, v{vM}, v{vST+10}, v{vST+12}")
    A(f"v_max_f32 v{vM}, v{vM}, v{vST+14}")
    for w in range(8): A(f"v_sub_f32 v{vST+2*w}, v{vST+2*w}, v{vM}")
    for w in range(8): A(f"v_exp_f32 v{vST+2*w}, v{vST+2*w}")
    A(f"v_mul_f32 v{vLS}, v{vST}, v{vST+1}")
    for w in range(1, 8): A(f"v_fmac_f32 v{vLS}, v{vST+2*w}, v{vST+2*w+1}")
    for w in range(8):
        A(f"s_waitcnt lgkmcnt({7-w})")
        for i in range(4):
            if w == 0: A(f"v_mul_f32 v{vACC+i}, v{vST}, v{vAC+i}")
            else: A(f"v_fmac_f32 v{vACC+i}, v{vST+2*w}, v{vAC+4*w+i}")
    for i in range(4): A(f"v_min_u32 v{vACC+i}, -2, v{vACC+i}")
    A(f"buffer_store_dwordx4 {r4(vACC)}, v{vVO}, {srd(sWS)}, s{sT} offen sc1")
    A(f"v_min_u32 v{vM}, -2, v{vM}")
    A(f"v_min_u32 v{vLS}, -2, v{vLS}")
    A(f"s_mov_b32 exec_lo, 1")
    A(f"s_mov_b32 exec_hi, 1")
    A(f"buffer_store_dwordx2 {r2(vM)}, v{vT1}, {srd(sWS)}, s{sT} offen offset:1024 sc1")
    A("s_mov_b64 exec, -1")
    stamp(11, True)
    A("s_branch L_br")

    LBL("L_late")
    vF = vS
    vMS = vS + 8
    A(f"v_bfe_u32 v{vT0}, v{vL}, 3, 1")
    A(f"v_and_b32 v{vT1}, 3, v{vL}")
    A(f"v_lshl_add_u32 v{vT0}, v{vT0}, 2, v{vT1}")
    A(f"v_mul_u32_u24 v{vT0}, {O_STR}, v{vT0}")
    A(f"v_lshrrev_b32 v{vT1}, 4, v{vL}")
    A(f"v_lshl_add_u32 v{vT1}, v{vT1}, 6, v{vT0}")
    A(f"v_bfe_u32 v{vT2}, v{vL}, 2, 1")
    A(f"v_lshl_add_u32 v{vT1}, v{vT2}, 5, v{vT1}")
    A(f"s_mul_i32 s{sT}, s{sG}, {8*O_STR}")
    A(f"s_add_u32 s{sT}, s{sT}, {WS_O:#x}")
    A(f"s_and_b32 s3, s{sW}, 3")
    A(f"s_lshl_b32 s{sT2}, s3, 8")
    A(f"s_add_u32 s{sT2}, s{sT2}, s{sT}")
    A(f"s_lshr_b32 s3, s3, 1")
    A(f"s_lshl_b32 s3, s3, 3")
    A(f"s_add_u32 s{sT}, s{sT}, s3")
    A(f"s_mov_b32 s{sCNT}, {SPIN}")
    LBL("L_poll1")
    A(f"buffer_load_dwordx2 {r2(vMS)}, v{vT0}, {srd(sWS)}, s{sT} offen offset:1024 sc1")
    A(f"buffer_load_dwordx4 {r4(vF)}, v{vT1}, {srd(sWS)}, s{sT2} offen sc1")
    A(f"buffer_load_dwordx4 {r4(vF+4)}, v{vT1}, {srd(sWS)}, s{sT2} offen offset:16 sc1")
    A("s_waitcnt vmcnt(0)")
    A(f"v_max3_u32 v{vT2}, v{vMS}, v{vMS+1}, v{vF}")
    A(f"v_max3_u32 v{vT3}, v{vF+1}, v{vF+2}, v{vF+3}")
    A(f"v_max3_u32 v{vT2}, v{vT2}, v{vF+4}, v{vF+5}")
    A(f"v_max3_u32 v{vT3}, v{vT3}, v{vF+6}, v{vF+7}")
    A(f"v_max_u32 v{vT2}, v{vT2}, v{vT3}")
    A(f"v_cmp_eq_u32 vcc, -1, v{vT2}")
    A("s_cbranch_vccz L_poll1done")
    A(f"s_sub_u32 s{sCNT}, s{sCNT}, 1")
    A("s_cbranch_scc1 L_end")
    A("s_sleep 1")
    A("s_branch L_poll1")
    LBL("L_poll1done")
    stamp(11, True)
    X1 = "quad_perm:[1,0,3,2] row_mask:0xf bank_mask:0xf"
    X2 = "quad_perm:[2,3,0,1] row_mask:0xf bank_mask:0xf"
    A(f"v_max_f32_dpp v{vT2}, v{vMS}, v{vMS} {X1}")
    A("s_nop 1")
    A(f"v_max_f32_dpp v{vT2}, v{vT2}, v{vT2} {X2}")
    A(f"v_sub_f32 v{vT2}, v{vMS}, v{vT2}")
    A(f"v_exp_f32 v{vT2}, v{vT2}")
    A("s_nop 0")
    A(f"v_mul_f32 v{vT3}, v{vT2}, v{vMS+1}")
    A("s_nop 1")
    A(f"v_add_f32_dpp v{vT3}, v{vT3}, v{vT3} {X1}")
    A("s_nop 1")
    A(f"v_add_f32_dpp v{vT3}, v{vT3}, v{vT3} {X2}")
    A(f"v_rcp_f32 v{vT3}, v{vT3}")
    A("s_nop 0")
    A(f"v_mul_f32 v{vT2}, v{vT2}, v{vT3}")
    for i in range(8): A(f"v_mul_f32 v{vF+i}, v{vT2}, v{vF+i}")
    for i in range(8): A(f"v_add_f32_dpp v{vF+i}, v{vF+i}, v{vF+i} {X1}")
    for i in range(8): A(f"v_add_f32_dpp v{vF+i}, v{vF+i}, v{vF+i} {X2}")
    for i in range(8): A(f"v_cvt_pk_bf16_f32 v{vF+i}, v{vF+i}, v{vF+i}")
    def op_a(n): onehot(Ab[n & 1], vF + (n & 7), n >> 3)
    op_a(0)
    for n in range(16):
        if n + 1 < 16: op_a(n + 1)
        A(f"v_mfma_f32_16x16x32_bf16 {r4(vACC)}, {r4(Ab[n&1])}, {r4(wslot(n))}, {'0' if n == 0 else r4(vACC)}")
    A(f"v_lshrrev_b32 v{vT0}, 5, v{vL}")
    A(f"v_mul_u32_u24 v{vT0}, {18*16}, v{vT0}")
    A(f"v_and_b32 v{vT1}, 15, v{vL}")
    A(f"v_lshl_add_u32 v{vT0}, v{vT1}, 5, v{vT0}")
    A(f"v_bfe_u32 v{vT1}, v{vL}, 4, 1")
    A(f"v_lshl_add_u32 v{vT0}, v{vT1}, 4, v{vT0}")
    A(f"s_and_b32 s3, s{sW}, 3")
    A(f"s_lshl_b32 s3, s3, 10")
    A(f"v_add_u32 v{vT0}, s3, v{vT0}")
    A("s_mov_b32 exec_lo, 0x01ff01ff")
    A("s_mov_b32 exec_hi, 0x01ff01ff")
    A(f"ds_write_b128 v{vT0}, {r4(vACC)} offset:{L_OUT}")
    A("s_waitcnt lgkmcnt(0)")
    A("s_barrier")
    stamp(12)
    A("s_branch L_end")

    LBL("L_br")
    A("s_barrier")
    stamp(12)
    A(f"s_lshl_b32 s{sT}, s{sP}, 3")
    A(f"s_add_u32 s{sT}, s{sT}, s{sJ}")
    A(f"s_mul_i32 s{sT}, s{sT}, {16*R_STR}")
    A(f"s_add_u32 s{sT}, s{sT}, {WS_R:#x}")
    A(f"s_cmp_eq_u32 s{sW}, 1")
    A("s_cbranch_scc1 L_final")
    A("s_mov_b32 exec_hi, 0xf")
    for w in range(4): A(f"ds_read_b128 {r4(vS+4*w)}, v{vVO} offset:{L_OUT+1024*w}")
    A(f"s_mul_i32 s3, s{sH}, {R_STR}")
    A(f"s_add_u32 s{sT}, s{sT}, s3")
    A("s_waitcnt lgkmcnt(2)")
    for i in range(4): A(f"v_add_f32 v{vS+i}, v{vS+i}, v{vS+4+i}")
    A("s_waitcnt lgkmcnt(0)")
    for i in range(4): A(f"v_add_f32 v{vS+8+i}, v{vS+8+i}, v{vS+12+i}")
    for i in range(4): A(f"v_add_f32 v{vS+i}, v{vS+i}, v{vS+8+i}")
    for i in range(4): A(f"v_min_u32 v{vS+i}, -2, v{vS+i}")
    A(f"buffer_store_dwordx4 {r4(vS)}, v{vVO}, {srd(sWS)}, s{sT} offen sc1")
    stamp(13)
    A("s_branch L_end")

    LBL("L_final")
    A(f"s_cmp_lt_u32 s{sH}, 9")
    A("s_cbranch_scc0 L_end")
    A(f"v_lshrrev_b32 v{vT0}, 2, v{vL}")
    A(f"v_mul_u32_u24 v{vT0}, {R_STR}, v{vT0}")
    A(f"v_and_b32 v{vT1}, 3, v{vL}")
    A(f"v_lshl_add_u32 v{vT0}, v{vT1}, 4, v{vT0}")
    A(f"s_lshl_b32 s3, s{sH}, 6")
    A(f"s_add_u32 s{sT}, s{sT}, s3")
    A(f"s_lshl_b32 s3, s{sH}, 2")
    A(f"v_add_u32 v{vT1}, s3, v{vT1}")
    A(f"v_cmp_lt_u32 vcc, 17, v{vT1}")
    A(f"v_lshlrev_b32 v{vT1}, 3, v{vT1}")
    A(f"v_add_u32 v{vT2}, {2304-144}, v{vT1}")
    A(f"s_mul_i32 s{sT2}, s{sP}, 1152")
    A(f"v_cndmask_b32 v{vT1}, v{vT1}, v{vT2}, vcc")
    A(f"s_mul_i32 s3, s{sJ}, 144")
    A(f"s_add_u32 s{sT2}, s{sT2}, s3")
    A(f"s_mov_b32 s{sCNT}, {SPIN}")
    LBL("L_poll2")
    A(f"buffer_load_dwordx4 {r4(vS)}, v{vT0}, {srd(sWS)}, s{sT} offen sc1")
    A("s_waitcnt vmcnt(0)")
    A(f"v_max3_u32 v{vT2}, v{vS}, v{vS+1}, v{vS+2}")
    A(f"v_max_u32 v{vT2}, v{vT2}, v{vS+3}")
    A(f"v_cmp_eq_u32 vcc, -1, v{vT2}")
    A("s_cbranch_vccz L_poll2done")
    A(f"s_sub_u32 s{sCNT}, s{sCNT}, 1")
    A("s_cbranch_scc1 L_end")
    A("s_sleep 1")
    A("s_branch L_poll2")
    LBL("L_poll2done")
    stamp(13)
    for rot in (4, 8):
        for i in range(4): A(f"v_add_f32_dpp v{vS+i}, v{vS+i}, v{vS+i} row_ror:{rot} row_mask:0xf bank_mask:0xf")
    for sw in ("v_permlane16_swap_b32", "v_permlane32_swap_b32"):
        for i in range(4): A(f"v_mov_b32 v{vS+4+i}, v{vS+i}")
        for i in range(4): A(f"{sw} v{vS+i}, v{vS+4+i}")
        for i in range(4): A(f"v_add_f32 v{vS+i}, v{vS+i}, v{vS+4+i}")
    A(f"v_cvt_pk_bf16_f32 v{vS+4}, v{vS}, v{vS+1}")
    A(f"v_cvt_pk_bf16_f32 v{vS+5}, v{vS+2}, v{vS+3}")
    A("s_mov_b64 exec, 0xf")
    A(f"buffer_store_dwordx2 {r2(vS+4)}, v{vT1}, {srd(sOUT)}, s{sT2} offen")
    A(f"s_or_b32 s3, s{sH}, s{sJ}")
    A("s_cbranch_scc1 L_end")
    A("s_mov_b64 exec, 1")
    A(f"v_mov_b32 v{vT0}, s{sTAG}")
    A(f"s_lshl_b32 s3, s{sP}, 8")
    A(f"v_mov_b32 v{vT1}, s3")
    A(f"buffer_store_dword v{vT0}, v{vT1}, {srd(sWS)}, 0 offen sc1")
    LBL("L_end")
    if opts.get('pad'):
        LBL("L_pad")
        A("s_memrealtime s[62:63]")
        A("s_waitcnt lgkmcnt(0)")
        A("s_sub_u32 s3, s62, s60")
        A(f"s_cmp_gt_u32 s3, {int(opts['pad']*100)}")
        A("s_cbranch_scc1 L_paddone")
        A("s_sleep 1")
        A("s_branch L_pad")
        LBL("L_paddone")
    if stamps:
        A("s_cmp_ge_u32 s2, 256")
        A("s_cbranch_scc1 L_end2")
        stamp(14)
        A("s_getreg_b32 s94, hwreg(HW_REG_XCC_ID)")
        A("s_mov_b32 s95, 0")
        A("s_mov_b64 exec, 1")
        A(f"s_add_u32 s4, s{sWS}, 0x8000000"); A(f"s_addc_u32 s5, s{sWS+1}, 0")
        A(f"s_lshl_b32 s3, s2, 3"); A(f"s_add_u32 s3, s3, s{sW}"); A("s_lshl_b32 s3, s3, 7")
        A("v_mov_b32 v1, s3")
        A("s_waitcnt lgkmcnt(0) vmcnt(0)")
        for i in range(8):
            for k in range(4): A(f"v_mov_b32 v{4+k}, s{64+4*i+k}")
            A(f"global_store_dwordx4 v1, v[4:7], s[4:5] offset:{16*i}")
            A("s_waitcnt vmcnt(0)")
        if opts.get('dbg'):
            A("s_load_dwordx2 s[6:7], s[0:1], 88")
            A("v_mov_b32 v1, 0")
            A("s_waitcnt lgkmcnt(0)")
            for i in range(15):
                A(f"s_sub_u32 s3, s{64+2*i}, s64")
                A("s_cmp_lt_u32 s3, 100000")
                A(f"s_cselect_b32 s3, s{64+2*i}, 0")
                A("v_mov_b32 v2, s3")
                A(f"global_atomic_umax v1, v2, s[6:7] offset:{4*i}")
            A("s_not_b32 s3, s64")
            A("v_mov_b32 v2, s3")
            A("global_atomic_umax v1, v2, s[6:7] offset:60")
        LBL("L_end2")
    A("s_endpgm")
    L.append('.section .rodata,"a"'); L.append(".p2align 6"); L.append(f".amdhsa_kernel {NAME}_kernel")
    L.append("  .amdhsa_next_free_vgpr 256"); L.append(f"  .amdhsa_next_free_sgpr {96 if stamps else 64}"); L.append("  .amdhsa_accum_offset 256")
    L.append("  .amdhsa_group_segment_fixed_size 0"); L.append("  .amdhsa_kernarg_size 104"); L.append("  .amdhsa_user_sgpr_count 2")
    L.append("  .amdhsa_user_sgpr_kernarg_segment_ptr 1"); L.append("  .amdhsa_system_sgpr_workgroup_id_x 1"); L.append(".end_amdhsa_kernel")
    return "\n".join(L) + "\n"

def f2u(f):
    import struct
    return struct.unpack("<I", struct.pack("<f", f))[0]

if __name__ == "__main__":
    open("k1.s", "w").write(gen(False))
    open("k1_st.s", "w").write(gen(True))
    open("k1_st_b0.s", "w").write(gen(True, opts=dict(cbar=0)))
    open("k1_b0.s", "w").write(gen(False, opts=dict(cbar=0)))
    open("k1_st_c.s", "w").write(gen(True, opts=dict(prio=1)))
    open("k1_dbg.s", "w").write(gen(True, opts=dict(dbg=1)))
    for D in (60, 40, 34, 30):
        open(f"../cdna_kernels/k1_pad{D}.s", "w").write(gen(False, opts=dict(pad=D)))
    open("a_nocomm.s", "w").write(gen(True, opts=dict(nocomm=1)))
    open("a_nocomm_nowo.s", "w").write(gen(True, opts=dict(nocomm=1, nowo=1)))
    open("a_nocomm_nowld.s", "w").write(gen(True, opts=dict(nocomm=1, nowld=1)))
    open("a_wqonly.s", "w").write(gen(True, opts=dict(wqonly=1)))
    open("a_wqonly_nowld.s", "w").write(gen(True, opts=dict(wqonly=1, nowld=1)))
```

```python
import sys, math
NAME = "concat_heads__gqa_block_cached__gqa_block_cached__decode"

WS_E    = 0x0
WS_FLAG = 0x1000
WS_Q    = 0x10000
WS_O    = 0x90000
WS_R    = 0xE0000
WS_SIZE = 0x200000
O_STR = 1152
R_STR = 640
L_Q = 0x000; L_QF = 0x200; L_ST = 0x240; L_ACC = 0x400; L_OUT = 0x2400; L_SIZE = 0x3400

TAGK = 0x9E3779B9
TAGX = 0x5BD1E995
SPIN = 1 << 20

def gen(stamps=False, NVP=20, opts=None):
    opts = opts or {}
    L = []
    def A(s): L.append("    " + s)
    def LBL(s): L.append(s + ":")
    def C(s): L.append("    ; " + s)
    nst = [0]
    def stamp(i, late=False):
        if late and opts.get('commonly'): return
        if opts.get('padst') == i:
            A("s_memrealtime s[60:61]"); A("s_mov_b32 s63, 1")
        if stamps:
            A(f"s_memrealtime s[{64+2*i}:{65+2*i}]")
    L.append(f"; @launch grid=(256,1,1) block=(512,1,1) lds={L_SIZE}")
    L.append('.amdgcn_target "amdgcn-amd-amdhsa--gfx950"')
    L.append(".text"); L.append(f".globl {NAME}_kernel"); L.append(".p2align 8"); L.append(f".type {NAME}_kernel,@function")
    L.append(f"{NAME}_kernel:")
    sK, sV, sWO, sWQ, sX, sWS, sOUT = 8, 12, 16, 20, 24, 28, 32
    sW, sP, sH, sJ, sG, sSL, sT, sE = 36, 37, 38, 39, 40, 41, 42, 43
    sTAG = 44
    sC = 46; sCNT = 47; sT2 = 48; sT3 = 49; sSELLO = 50; sSELHI = 51; sEX = 52
    sM = 52
    def srd(b): return f"s[{b}:{b+3}]"
    vKO, vVO = 1, 2
    vT0, vT1, vT2, vT3 = 3, 4, 5, 6
    vL = 7
    vQ = 8
    vMK = 12
    vA0 = 16
    vA1 = 20
    vACC = 24
    vM, vLS = 28, 29
    vT4, vT5 = 30, 31
    vS = 32
    vVP = 48
    vKS = 128
    assert vVP + 4 * NVP <= vKS
    def kslot(n): return vKS + 4 * n
    def vslot(n): return vVP + 4 * n if n < NVP else kslot(n - NVP)
    NVR = 32 - NVP
    def wslot(n): return kslot(NVR + n)
    assert NVR + 16 <= 32 and NVR % 4 == 0
    def r4(b): return f"v[{b}:{b+3}]"
    def r2(b): return f"v[{b}:{b+1}]"

    stamp(0)
    if opts.get('pad') and 'padst' not in opts: A("s_memrealtime s[60:61]")
    if opts.get('pad'): A(f"s_mov_b32 s63, {0 if opts.get('padst') else 1}")
    A("s_cmp_ge_u32 s2, 256")
    A("s_cbranch_scc1 L_end")
    A(f"s_lshr_b32 s{sP}, s2, 7")
    A(f"s_mul_i32 s3, s{sP}, 40")
    A(f"s_load_dwordx2 s[{sK}:{sK+1}], s[0:1], s3 offset:8")
    A(f"s_load_dwordx2 s[{sV}:{sV+1}], s[0:1], s3 offset:16")
    A(f"s_load_dwordx2 s[{sWQ}:{sWQ+1}], s[0:1], s3 offset:24")
    A(f"s_load_dwordx2 s[{sX}:{sX+1}], s[0:1], s3 offset:0")
    A(f"s_load_dwordx2 s[{sWS}:{sWS+1}], s[0:1], 96")
    A(f"s_load_dwordx2 s[{sWO}:{sWO+1}], s[0:1], s3 offset:32")
    A(f"s_load_dwordx2 s[{sOUT}:{sOUT+1}], s[0:1], 80")
    A(f"v_lshrrev_b32 v{vT0}, 6, v0")
    A(f"v_and_b32 v{vL}, 63, v0")
    A(f"v_readfirstlane_b32 s{sW}, v{vT0}")
    A(f"s_and_b32 s{sH}, s2, 7")
    A(f"s_bfe_u32 s3, s2, 0x10006")
    A(f"s_lshl_b32 s3, s3, 3")
    A(f"s_add_u32 s{sH}, s{sH}, s3")
    A(f"s_bfe_u32 s{sJ}, s2, 0x30003")
    A(f"s_lshl_b32 s{sG}, s{sP}, 4")
    A(f"s_add_u32 s{sG}, s{sG}, s{sH}")
    A(f"s_lshr_b32 s3, s{sJ}, 2")
    A(f"s_lshl_b32 s{sSL}, s3, 24")
    A(f"s_lshl_b32 s3, s{sH}, 20")
    A(f"s_add_u32 s{sSL}, s{sSL}, s3")
    A(f"s_and_b32 s3, s{sJ}, 3")
    A(f"s_lshl_b32 s3, s3, 18")
    A(f"s_add_u32 s{sSL}, s{sSL}, s3")
    A(f"s_and_b32 s3, s{sW}, 3")
    A(f"s_lshl_b32 s3, s3, 12")
    A(f"s_add_u32 s{sSL}, s{sSL}, s3")
    A(f"s_lshr_b32 s3, s{sW}, 2")
    A(f"s_lshl_b32 s3, s3, 17")
    A(f"s_add_u32 s{sSL}, s{sSL}, s3")
    for b, sz in ((sK, 0x2000000), (sV, 0x2000000), (sWQ, 576*8192), (sX, 2304), (sWS, WS_SIZE), (sOUT, 4608)):
        A(f"s_mov_b32 s{b+2}, {sz:#x}"); A(f"s_mov_b32 s{b+3}, 0x20000")
    A(f"s_cmp_ge_u32 s{sW}, 4")
    A(f"s_cselect_b32 s{sWO+2}, {0 if opts.get('nowo') else 4096*1152:#x}, 0")
    A(f"s_mov_b32 s{sWO+3}, 0x20000")
    A(f"v_lshlrev_b32 v{vVO}, 4, v{vL}")
    A(f"v_and_b32 v{vT0}, 3, v{vL}")
    A(f"v_lshlrev_b32 v{vT0}, 4, v{vT0}")
    A(f"v_bfe_u32 v{vT1}, v{vL}, 2, 2")
    A(f"v_lshlrev_b32 v{vT1}, 8, v{vT1}")
    A(f"v_lshrrev_b32 v{vT2}, 4, v{vL}")
    A(f"v_lshlrev_b32 v{vKO}, 6, v{vT2}")
    A(f"v_add3_u32 v{vKO}, v{vKO}, v{vT0}, v{vT1}")
    A(f"v_and_b32 v{vT0}, 1, v{vL}")
    A(f"v_lshlrev_b32 v{vT0}, 4, v{vT0}")
    A(f"v_mov_b32 v{vT1}, 0xffff")
    A(f"v_lshlrev_b32 v{vT0}, v{vT0}, v{vT1}")
    A(f"v_bfe_u32 v{vT1}, v{vL}, 1, 2")
    for w in range(4): A(f"v_cmp_eq_u32 s[{sM+2*w}:{sM+2*w+1}], {w}, v{vT1}")
    A("s_nop 1")
    for w in range(4): A(f"v_cndmask_b32 v{vMK+w}, 0, v{vT0}, s[{sM+2*w}:{sM+2*w+1}]")
    A(f"s_mov_b32 s{sC}, {f2u(math.log2(math.e)/math.sqrt(128.0)):#x}")
    for i in range(4): A(f"v_mov_b32 v{vA0+i}, 0")
    A("s_mov_b64 exec, 1")
    A(f"ds_write_b128 v{vA0}, {r4(vA0)} offset:{L_QF}")
    A("s_mov_b64 exec, -1")
    A("s_waitcnt lgkmcnt(0)")
    stamp(1)
    A(f"s_lshl_b32 s3, s{sP}, 8")
    A(f"s_load_dword s{sE}, s[{sWS}:{sWS+1}], s3")
    if opts.get('nocomm'): A("s_branch L_stream")
    A(f"s_cmp_ge_u32 s{sW}, 2")
    A("s_cbranch_scc1 L_stream0")

    C("---- q projection: wave 6+c handles head c of the pair, rows 72j..72j+71 ----")
    if opts.get('prio'): A("s_setprio 3")
    sCH = sT3
    A(f"s_mov_b32 s{sCH}, s{sW}")
    vX = vVP
    vWQO = vT4
    A(f"v_bfe_u32 v{vT0}, v{vL}, 3, 1")
    A(f"v_mul_u32_u24 v{vT0}, 1152, v{vT0}")
    A(f"v_mad_u32_u24 v{vT0}, v{vT2}, 36, v{vT0}")
    A(f"s_mul_i32 s{sT}, s{sJ}, 144")
    A(f"buffer_load_dwordx4 {r4(vX)}, v{vT0}, {srd(sX)}, s{sT} offen")
    A(f"buffer_load_dwordx4 {r4(vX+4)}, v{vT0}, {srd(sX)}, s{sT} offen offset:16")
    A(f"buffer_load_dword v{vX+8}, v{vT0}, {srd(sX)}, s{sT} offen offset:32")
    A(f"v_and_b32 v{vT1}, 15, v{vL}")
    A(f"v_lshlrev_b32 v{vT1}, 4, v{vT1}")
    A(f"v_mul_u32_u24 v{vWQO}, {18*8192}, v{vT2}")
    A(f"v_add_u32 v{vWQO}, v{vWQO}, v{vT1}")
    A(f"s_mul_i32 s{sT}, s{sJ}, {72*8192}")
    A(f"s_lshl_b32 s3, s{sH}, 9")
    A(f"s_add_u32 s{sT}, s{sT}, s3")
    A(f"s_lshl_b32 s3, s{sCH}, 8")
    A(f"s_add_u32 s{sT}, s{sT}, s3")
    for n in range(18):
        A(f"buffer_load_dwordx4 {r4(kslot(n))}, v{vWQO}, {srd(sWQ)}, s{sT} offen {opts.get('wqflags','nt')}")
        if n < 17: A(f"s_add_u32 s{sT}, s{sT}, 8192")
        if n == opts.get('cbar', 17): A("s_barrier")
    opts.get("commonly") and stamp(8)
    vSENT = vS
    for i in range(4): A(f"v_mov_b32 v{vSENT+i}, -1")
    A(f"s_lshl_b32 s{sT2}, s{sG}, 3")
    A(f"s_add_u32 s{sT2}, s{sT2}, s{sJ}")
    A(f"s_cmp_eq_u32 s{sCH}, 0")
    A("s_cbranch_scc0 L_clrR")
    A(f"s_mul_i32 s{sT}, s{sT2}, {O_STR}")
    A(f"s_add_u32 s{sT}, s{sT}, {WS_O:#x}")
    A(f"buffer_store_dwordx4 {r4(vSENT)}, v{vVO}, {srd(sWS)}, s{sT} offen sc1")
    A(f"s_mov_b64 exec, 1")
    A(f"buffer_store_dwordx4 {r4(vSENT)}, v{vVO}, {srd(sWS)}, s{sT} offen offset:1024 sc1")
    A(f"s_branch L_clrdone")
    LBL("L_clrR")
    A(f"s_lshl_b32 s{sT}, s{sP}, 3")
    A(f"s_add_u32 s{sT}, s{sT}, s{sJ}")
    A(f"s_lshl_b32 s{sT}, s{sT}, 4")
    A(f"s_add_u32 s{sT}, s{sT}, s{sH}")
    A(f"s_mul_i32 s{sT}, s{sT}, {R_STR}")
    A(f"s_add_u32 s{sT}, s{sT}, {WS_R:#x}")
    A("s_mov_b32 exec_hi, 0xf")
    A(f"buffer_store_dwordx4 {r4(vSENT)}, v{vVO}, {srd(sWS)}, s{sT} offen sc1")
    A(f"s_mov_b64 exec, 1")
    A(f"buffer_store_dwordx4 {r4(vSENT)}, v{vVO}, {srd(sWS)}, s{sT} offen sc1")
    LBL("L_clrdone")
    A("s_mov_b64 exec, -1")
    A(f"s_mov_b32 s{sSELLO}, 0x01000100")
    A(f"s_mov_b32 s{sSELHI}, 0x03020302")
    Ab = [vA0, vA1]
    def xop(n):
        a = Ab[n & 1]
        A(f"v_perm_b32 v{vT0}, v{vX + (n>>1)}, v{vX + (n>>1)}, s{sSELHI if n & 1 else sSELLO}")
        for w in range(4): A(f"v_and_b32 v{a+w}, v{vT0}, v{vMK+w}")
    A("s_waitcnt vmcnt(20)")
    opts.get("commonly") and stamp(9)
    xop(0)
    for n in range(18):
        if n + 1 < 18: xop(n + 1)
        else: A("s_nop 1")
        A(f"s_waitcnt vmcnt({17 - n + 2})")
        if n == 0: opts.get("commonly") and stamp(10)
        if n == 9: opts.get("commonly") and stamp(11)
        A(f"v_mfma_f32_16x16x32_bf16 {r4(vACC)}, {r4(Ab[n&1])}, {r4(kslot(n))}, {'0' if n == 0 else r4(vACC)}")
    A(f"v_lshrrev_b32 v{vT0}, 5, v{vL}")
    A(f"v_lshlrev_b32 v{vT0}, 9, v{vT0}")
    A(f"v_and_b32 v{vT1}, 15, v{vL}")
    A(f"v_lshlrev_b32 v{vT1}, 5, v{vT1}")
    A(f"v_bfe_u32 v{vT3}, v{vL}, 4, 1")
    A(f"v_lshlrev_b32 v{vT3}, 4, v{vT3}")
    A(f"v_add3_u32 v{vT0}, v{vT0}, v{vT1}, v{vT3}")
    A(f"s_lshl_b32 s{sT}, s{sT2}, 1")
    A(f"s_add_u32 s{sT}, s{sT}, s{sCH}")
    A(f"s_lshl_b32 s{sT}, s{sT}, 10")
    A(f"s_add_u32 s{sT}, s{sT}, {WS_Q:#x}")
    A(f"buffer_store_dwordx4 {r4(vACC)}, v{vT0}, {srd(sWS)}, s{sT} offen sc1")
    stamp(2)
    if opts.get('wqonly'): A("s_branch L_stream")
    A("s_waitcnt lgkmcnt(0)")
    A(f"s_add_u32 s{sTAG}, s{sE}, {TAGK:#x}")
    A(f"s_xor_b32 s{sTAG+1}, s{sTAG}, {TAGX:#x}")
    A(f"v_mov_b32 v{vT4}, s{sTAG}")
    A(f"v_mov_b32 v{vT5}, s{sTAG+1}")
    A(f"s_lshl_b32 s{sT}, s{sG}, 1")
    A(f"s_add_u32 s{sT}, s{sT}, s{sCH}")
    A(f"s_lshl_b32 s{sT}, s{sT}, 7")
    A(f"s_add_u32 s{sT}, s{sT}, {WS_FLAG:#x}")
    A(f"s_lshl_b32 s3, s{sJ}, 3")
    A(f"v_mov_b32 v{vT0}, s3")
    A(f"v_lshlrev_b32 v{vT1}, 3, v{vL}")
    A("s_waitcnt vmcnt(0)")
    A("s_mov_b64 exec, 1")
    A(f"buffer_store_dwordx2 {r2(vT4)}, v{vT0}, {srd(sWS)}, s{sT} offen sc1")
    A("s_mov_b64 exec, 0xff")
    A(f"s_mov_b32 s{sCNT}, {SPIN}")
    stamp(3)
    LBL("L_poll0")
    A(f"buffer_load_dwordx2 {r2(vS)}, v{vT1}, {srd(sWS)}, s{sT} offen sc1")
    A("s_waitcnt vmcnt(0)")
    A(f"v_cmp_ne_u64 vcc, s[{sTAG}:{sTAG+1}], {r2(vS)}")
    A("s_cbranch_vccz L_poll0done")
    A(f"s_sub_u32 s{sCNT}, s{sCNT}, 1")
    A("s_cbranch_scc1 L_end")
    A("s_sleep 2")
    A("s_branch L_poll0")
    LBL("L_poll0done")
    A("s_mov_b64 exec, -1")
    stamp(4)
    A(f"v_lshrrev_b32 v{vT0}, 5, v{vL}")
    A(f"v_lshlrev_b32 v{vT0}, 11, v{vT0}")
    A(f"v_and_b32 v{vT1}, 31, v{vL}")
    A(f"v_lshl_add_u32 v{vT0}, v{vT1}, 4, v{vT0}")
    A(f"s_lshl_b32 s{sT}, s{sG}, 14")
    A(f"s_lshl_b32 s3, s{sCH}, 10")
    A(f"s_add_u32 s{sT}, s{sT}, s3")
    A(f"s_lshr_b32 s3, s{sJ}, 2")
    A(f"s_lshl_b32 s3, s3, 9")
    A(f"s_add_u32 s{sT}, s{sT}, s3")
    A(f"s_add_u32 s{sT}, s{sT}, {WS_Q:#x}")
    for i in range(4):
        A(f"buffer_load_dwordx4 {r4(vS+4*i)}, v{vT0}, {srd(sWS)}, s{sT} offen sc1")
        if i < 3: A(f"s_add_u32 s{sT}, s{sT}, 4096")
    A(f"v_lshlrev_b32 v{vT1}, 3, v{vT1}")
    A(f"s_lshl_b32 s3, s{sCH}, 8")
    A(f"v_add_u32 v{vT1}, s3, v{vT1}")
    A("s_waitcnt vmcnt(0)")
    for i in range(4): A(f"v_add_f32 v{vS+i}, v{vS+i}, v{vS+4+i}")
    for i in range(4): A(f"v_add_f32 v{vS+8+i}, v{vS+8+i}, v{vS+12+i}")
    for i in range(4): A(f"v_add_f32 v{vS+i}, v{vS+i}, v{vS+8+i}")
    for i in range(4): A(f"v_mov_b32 v{vS+4+i}, v{vS+i}")
    A("s_nop 1")
    for i in range(4): A(f"v_permlane32_swap_b32 v{vS+i}, v{vS+4+i}")
    for i in range(4): A(f"v_add_f32 v{vS+i}, v{vS+i}, v{vS+4+i}")
    A(f"v_cvt_pk_bf16_f32 v{vS+8}, v{vS}, v{vS+1}")
    A(f"v_cvt_pk_bf16_f32 v{vS+9}, v{vS+2}, v{vS+3}")
    A(f"ds_write_b64 v{vT1}, {r2(vS+8)} offset:{L_Q}")
    A(f"s_lshl_b32 s3, s{sCH}, 3")
    A(f"v_mov_b32 v{vT0}, s3")
    A("s_waitcnt lgkmcnt(0)")
    A("s_mov_b64 exec, 1")
    A(f"ds_write_b64 v{vT0}, {r2(vT4)} offset:{L_QF}")
    A("s_mov_b64 exec, -1")
    if opts.get('prio'): A("s_setprio 0")
    stamp(5)

    A("s_branch L_stream")
    LBL("L_stream0")
    A("s_barrier")
    LBL("L_stream")
    issued = []
    cur = {"so": None}
    def soff(m):
        if cur["so"] != m:
            A(f"s_add_u32 s{sT}, s{sSL}, {m*16384}")
            cur["so"] = m
    def ldK(n):
        soff(n >> 2)
        A(f"buffer_load_dwordx4 {r4(kslot(n))}, v{vKO}, {srd(sK)}, s{sT} offen offset:{(n&3)*1024} nt")
        issued.append(("K", n))
    def ldV(n):
        soff(n >> 2)
        A(f"buffer_load_dwordx4 {r4(vslot(n))}, v{vVO}, {srd(sV)}, s{sT} offen offset:{(n&3)*1024} nt")
        issued.append(("V", n))
    vWOO = vT3
    def ldW(n):
        if n % 3 == 0 and n:
            A(f"s_add_u32 s{sT2}, s{sT2}, {3*1152}")
        A(f"buffer_load_dwordx4 {r4(wslot(n))}, v{vWOO}, {srd(sWO)}, s{sT2} offen offset:{(n%3)*1152} nt")
        issued.append(("W", n))
    def wait(op):
        k = len(issued) - 1 - issued.index(op)
        A(f"s_waitcnt vmcnt({k})")
    for n in range(32): ldK(n)
    cur["so"] = None
    for n in range(NVP): ldV(n)
    stamp(6)
    A(f"v_and_b32 v{vT0}, 15, v{vL}")
    A(f"v_lshrrev_b32 v{vT1}, 4, v{vL}")
    A(f"v_mul_u32_u24 v{vWOO}, {16*1152}, v{vT1}")
    A(f"v_lshl_add_u32 v{vWOO}, v{vT0}, 4, v{vWOO}")
    A(f"v_cmp_lt_u32 vcc, 8, v{vT0}")
    A(f"v_bfrev_b32 v{vT0}, 1")
    A(f"s_lshl_b32 s{sT2}, s{sH}, 2")
    A(f"v_cndmask_b32 v{vWOO}, v{vWOO}, v{vT0}, vcc")
    A(f"s_and_b32 s3, s{sW}, 3")
    A(f"s_add_u32 s{sT2}, s{sT2}, s3")
    A(f"s_mul_i32 s{sT2}, s{sT2}, {64*1152}")
    A(f"s_mul_i32 s3, s{sJ}, 144")
    A(f"s_add_u32 s{sT2}, s{sT2}, s3")
    A(f"v_bfe_u32 v{vT0}, v{vL}, 3, 1")
    A(f"v_lshlrev_b32 v{vT0}, 8, v{vT0}")
    A(f"v_lshl_add_u32 v{vT0}, v{vT1}, 6, v{vT0}")
    A(f"v_and_b32 v{vT1}, 3, v{vL}")
    A(f"v_lshl_add_u32 v{vT0}, v{vT1}, 4, v{vT0}")
    A(f"v_mov_b32 v{vT1}, 0")
    A("s_waitcnt lgkmcnt(0)")
    A(f"s_add_u32 s{sTAG}, s{sE}, {TAGK:#x}")
    A(f"s_xor_b32 s{sTAG+1}, s{sTAG}, {TAGX:#x}")
    A(f"s_mov_b32 s{sCNT}, {SPIN}")
    if opts.get('nocomm') or opts.get('wqonly'): A("s_branch L_qready")
    LBL("L_qwait")
    A(f"ds_read_b128 {r4(vA0)}, v{vT1} offset:{L_QF}")
    A("s_waitcnt lgkmcnt(0)")
    A(f"v_cmp_ne_u64 vcc, s[{sTAG}:{sTAG+1}], {r2(vA0)}")
    A(f"v_cmp_ne_u64 s[{sEX}:{sEX+1}], s[{sTAG}:{sTAG+1}], {r2(vA0+2)}")
    A(f"s_or_b64 vcc, vcc, s[{sEX}:{sEX+1}]")
    A("s_cbranch_vccz L_qready")
    A(f"s_sub_u32 s{sCNT}, s{sCNT}, 1")
    A("s_cbranch_scc1 L_end")
    A("s_sleep 4")
    A("s_branch L_qwait")
    LBL("L_qready")
    A(f"ds_read_b128 {r4(vQ)}, v{vT0} offset:{L_Q}")
    stamp(7)
    A("s_waitcnt lgkmcnt(0)")
    def qk_mfma(b):
        wait(("K", 4 * b + 3))
        for i in range(4):
            n = 4 * b + i
            A(f"v_mfma_f32_16x16x32_bf16 {r4(kslot(n))}, {r4(kslot(n))}, {r4(vQ)}, 0")
    def qk_red(b):
        t = b >> 1; x = b & 1
        bm = 0x5 if x == 0 else 0xa
        for c in range(4):
            for i in range(4):
                n = 4 * b + i; d = vS + 4 * t + i
                if c == 0:
                    A(f"v_mov_b32_dpp v{d}, v{kslot(n)} quad_perm:[0,0,0,0] row_mask:0xf bank_mask:{bm:#x}")
                else:
                    A(f"v_add_f32_dpp v{d}, v{kslot(n)+c}, v{d} quad_perm:[{c},{c},{c},{c}] row_mask:0xf bank_mask:{bm:#x}")
    refill = [("V", n) for n in range(NVP, 32)] + ([] if opts.get('nowld') else [("W", n) for n in range(16)])
    qk_mfma(0)
    for b in range(8):
        if b + 1 < 8: qk_mfma(b + 1)
        else: A("s_nop 7")
        if b == 0: A("s_nop 3")
        qk_red(b)
        for kind, n in refill[4 * b: 4 * b + 4]:
            (ldV if kind == "V" else ldW)(n)
    A(f"v_max3_f32 v{vT0}, v{vS}, v{vS+1}, v{vS+2}")
    A(f"v_max3_f32 v{vT1}, v{vS+3}, v{vS+4}, v{vS+5}")
    A(f"v_max3_f32 v{vT2}, v{vS+6}, v{vS+7}, v{vS+8}")
    A(f"v_max3_f32 v{vT0}, v{vT0}, v{vS+9}, v{vS+10}")
    A(f"v_max3_f32 v{vT1}, v{vT1}, v{vS+11}, v{vS+12}")
    A(f"v_max3_f32 v{vT2}, v{vT2}, v{vS+13}, v{vS+14}")
    A(f"v_max3_f32 v{vT0}, v{vT0}, v{vT1}, v{vS+15}")
    A(f"v_max_f32 v{vM}, v{vT0}, v{vT2}")
    def allred(v, t, op):
        A("s_nop 1")
        A(f"{op}_dpp v{v}, v{v}, v{v} row_half_mirror row_mask:0xf bank_mask:0xf")
        A(f"v_mov_b32 v{t}, v{v}")
        A("s_nop 1")
        A(f"v_permlane16_swap_b32 v{v}, v{t}")
        A(f"{op} v{v}, v{v}, v{t}")
        A(f"v_mov_b32 v{t}, v{v}")
        A("s_nop 1")
        A(f"v_permlane32_swap_b32 v{v}, v{t}")
        A(f"{op} v{v}, v{v}, v{t}")
    allred(vM, vT0, "v_max_f32")
    A(f"v_mul_f32 v{vM}, s{sC}, v{vM}")
    for k in range(16): A(f"v_fma_f32 v{vS+k}, v{vS+k}, s{sC}, -v{vM}")
    for k in range(16): A(f"v_exp_f32 v{vS+k}, v{vS+k}")
    A(f"v_add_f32 v{vLS}, v{vS}, v{vS+1}")
    A(f"v_add_f32 v{vT0}, v{vS+2}, v{vS+3}")
    for k in range(4, 16, 2):
        A(f"v_add_f32 v{vLS}, v{vLS}, v{vS+k}")
        A(f"v_add_f32 v{vT0}, v{vT0}, v{vS+k+1}")
    A(f"v_add_f32 v{vLS}, v{vLS}, v{vT0}")
    for k in range(16): A(f"v_cvt_pk_bf16_f32 v{vS+k}, v{vS+k}, v{vS+k}")
    allred(vLS, vT0, "v_add_f32")
    A(f"v_lshlrev_b32 v{vT0}, 3, v{vL}")
    A(f"s_lshl_b32 s3, s{sW}, 3")
    A(f"v_add_u32 v{vT0}, s3, v{vT0}")
    A("s_mov_b64 exec, 0x101")
    A(f"ds_write_b64 v{vT0}, {r2(vM)} offset:{L_ST}")
    A("s_mov_b64 exec, -1")
    stamp(8, True)
    def onehot(dst, src, x):
        for w in range(4):
            if (w >> 1) == x:
                A(f"v_and_b32 v{dst+w}, v{src}, v{vMK+w}")
            else:
                sh = "row_shr:4" if x == 0 else "row_shl:4"
                A(f"v_and_b32_dpp v{dst+w}, v{src}, v{vMK+w} {sh} row_mask:0xf bank_mask:0xf bound_ctrl:0")
    def pv_a(n): onehot(Ab[n & 1], vS + 4 * (n >> 3) + (n & 3), (n >> 2) & 1)
    pv_a(0)
    for n in range(32):
        if n + 1 < 32: pv_a(n + 1)
        wait(("V", n))
        A(f"v_mfma_f32_16x16x32_bf16 {r4(vACC)}, {r4(Ab[n&1])}, {r4(vslot(n))}, {'0' if n == 0 else r4(vACC)}")
    A(f"v_lshrrev_b32 v{vT0}, 5, v{vL}")
    A(f"v_lshlrev_b32 v{vT0}, 9, v{vT0}")
    A(f"v_and_b32 v{vT1}, 15, v{vL}")
    A(f"v_lshl_add_u32 v{vT0}, v{vT1}, 5, v{vT0}")
    A(f"v_bfe_u32 v{vT1}, v{vL}, 4, 1")
    A(f"v_lshl_add_u32 v{vT0}, v{vT1}, 4, v{vT0}")
    A(f"s_lshl_b32 s3, s{sW}, 10")
    A(f"v_add_u32 v{vT0}, s3, v{vT0}")
    A(f"ds_write_b128 v{vT0}, {r4(vACC)} offset:{L_ACC}")
    stamp(9, True)
    if opts.get('nocomm') or opts.get('wqonly'): A("s_branch L_nochk")
    A(f"s_cmp_eq_u32 s{sW}, 1")
    A("s_cbranch_scc0 L_nochk")
    A(f"s_cmp_lt_u32 s{sH}, 9")
    A("s_cbranch_scc0 L_nochk")
    A(f"v_lshlrev_b32 v{vT1}, 8, v{vL}")
    A(f"s_lshl_b32 s{sT}, s{sP}, 12")
    A(f"s_lshl_b32 s3, s{sJ}, 3")
    A(f"s_add_u32 s{sT}, s{sT}, s3")
    A(f"s_add_u32 s{sT}, s{sT}, {WS_FLAG + 128:#x}")
    A("s_mov_b64 exec, 0xffff")
    A(f"s_mov_b32 s{sCNT}, {SPIN}")
    LBL("L_poll2c")
    A(f"buffer_load_dwordx2 {r2(vS)}, v{vT1}, {srd(sWS)}, s{sT} offen sc1")
    A("s_waitcnt vmcnt(0)")
    A(f"v_cmp_ne_u64 vcc, s[{sTAG}:{sTAG+1}], {r2(vS)}")
    A("s_cbranch_vccz L_poll2cdone")
    A(f"s_sub_u32 s{sCNT}, s{sCNT}, 1")
    A("s_cbranch_scc1 L_end")
    A("s_sleep 2")
    A("s_branch L_poll2c")
    LBL("L_poll2cdone")
    A("s_mov_b64 exec, -1")
    LBL("L_nochk")
    A("s_waitcnt lgkmcnt(0)")
    A("s_barrier")
    stamp(10, True)
    if opts.get('nocomm') or opts.get('wqonly'):
        A("s_waitcnt vmcnt(0)")
        stamp(11)
        A("s_branch L_end")
    A(f"s_cmp_ge_u32 s{sW}, 4")
    A("s_cbranch_scc1 L_late")
    A(f"s_cmp_ge_u32 s{sW}, 2")
    A("s_cbranch_scc1 L_end")
    A(f"s_cmp_eq_u32 s{sW}, 1")
    A("s_cbranch_scc1 L_br")
    vST = vS
    vAC = vVP
    A(f"v_lshrrev_b32 v{vT0}, 5, v{vL}")
    A(f"v_lshlrev_b32 v{vT0}, 6, v{vT0}")
    for i in range(4): A(f"ds_read_b128 {r4(vST+4*i)}, v{vT0} offset:{L_ST+16*i}")
    for w in range(8): A(f"ds_read_b128 {r4(vAC+4*w)}, v{vVO} offset:{L_ACC+1024*w}")
    A(f"s_lshl_b32 s{sT}, s{sG}, 3")
    A(f"s_add_u32 s{sT}, s{sT}, s{sJ}")
    A(f"s_mul_i32 s{sT}, s{sT}, {O_STR}")
    A(f"s_add_u32 s{sT}, s{sT}, {WS_O:#x}")
    A(f"v_lshrrev_b32 v{vT1}, 3, v{vT0}")
    A("s_waitcnt lgkmcnt(8)")
    A(f"v_max3_f32 v{vM}, v{vST}, v{vST+2}, v{vST+4}")
    A(f"v_max3_f32 v{vM}, v{vM}, v{vST+6}, v{vST+8}")
    A(f"v_max3_f32 v{vM}, v{vM}, v{vST+10}, v{vST+12}")
    A(f"v_max_f32 v{vM}, v{vM}, v{vST+14}")
    for w in range(8): A(f"v_sub_f32 v{vST+2*w}, v{vST+2*w}, v{vM}")
    for w in range(8): A(f"v_exp_f32 v{vST+2*w}, v{vST+2*w}")
    A(f"v_mul_f32 v{vLS}, v{vST}, v{vST+1}")
    for w in range(1, 8): A(f"v_fmac_f32 v{vLS}, v{vST+2*w}, v{vST+2*w+1}")
    for w in range(8):
        A(f"s_waitcnt lgkmcnt({7-w})")
        for i in range(4):
            if w == 0: A(f"v_mul_f32 v{vACC+i}, v{vST}, v{vAC+i}")
            else: A(f"v_fmac_f32 v{vACC+i}, v{vST+2*w}, v{vAC+4*w+i}")
    for i in range(4): A(f"v_min_u32 v{vACC+i}, -2, v{vACC+i}")
    A(f"buffer_store_dwordx4 {r4(vACC)}, v{vVO}, {srd(sWS)}, s{sT} offen sc1")
    A(f"v_min_u32 v{vM}, -2, v{vM}")
    A(f"v_min_u32 v{vLS}, -2, v{vLS}")
    A(f"s_mov_b32 exec_lo, 1")
    A(f"s_mov_b32 exec_hi, 1")
    A(f"buffer_store_dwordx2 {r2(vM)}, v{vT1}, {srd(sWS)}, s{sT} offen offset:1024 sc1")
    A("s_mov_b64 exec, -1")
    stamp(11, True)
    A("s_branch L_br")

    LBL("L_late")
    vF = vS
    vMS = vS + 8
    A(f"v_bfe_u32 v{vT0}, v{vL}, 3, 1")
    A(f"v_and_b32 v{vT1}, 3, v{vL}")
    A(f"v_lshl_add_u32 v{vT0}, v{vT0}, 2, v{vT1}")
    A(f"v_mul_u32_u24 v{vT0}, {O_STR}, v{vT0}")
    A(f"v_lshrrev_b32 v{vT1}, 4, v{vL}")
    A(f"v_lshl_add_u32 v{vT1}, v{vT1}, 6, v{vT0}")
    A(f"v_bfe_u32 v{vT2}, v{vL}, 2, 1")
    A(f"v_lshl_add_u32 v{vT1}, v{vT2}, 5, v{vT1}")
    A(f"s_mul_i32 s{sT}, s{sG}, {8*O_STR}")
    A(f"s_add_u32 s{sT}, s{sT}, {WS_O:#x}")
    A(f"s_and_b32 s3, s{sW}, 3")
    A(f"s_lshl_b32 s{sT2}, s3, 8")
    A(f"s_add_u32 s{sT2}, s{sT2}, s{sT}")
    A(f"s_lshr_b32 s3, s3, 1")
    A(f"s_lshl_b32 s3, s3, 3")
    A(f"s_add_u32 s{sT}, s{sT}, s3")
    A(f"s_mov_b32 s{sCNT}, {SPIN}")
    LBL("L_poll1")
    A(f"buffer_load_dwordx2 {r2(vMS)}, v{vT0}, {srd(sWS)}, s{sT} offen offset:1024 sc1")
    A(f"buffer_load_dwordx4 {r4(vF)}, v{vT1}, {srd(sWS)}, s{sT2} offen sc1")
    A(f"buffer_load_dwordx4 {r4(vF+4)}, v{vT1}, {srd(sWS)}, s{sT2} offen offset:16 sc1")
    A("s_waitcnt vmcnt(0)")
    A(f"v_max3_u32 v{vT2}, v{vMS}, v{vMS+1}, v{vF}")
    A(f"v_max3_u32 v{vT3}, v{vF+1}, v{vF+2}, v{vF+3}")
    A(f"v_max3_u32 v{vT2}, v{vT2}, v{vF+4}, v{vF+5}")
    A(f"v_max3_u32 v{vT3}, v{vT3}, v{vF+6}, v{vF+7}")
    A(f"v_max_u32 v{vT2}, v{vT2}, v{vT3}")
    A(f"v_cmp_eq_u32 vcc, -1, v{vT2}")
    A("s_cbranch_vccz L_poll1done")
    A(f"s_sub_u32 s{sCNT}, s{sCNT}, 1")
    A("s_cbranch_scc1 L_end")
    A("s_sleep 1")
    A("s_branch L_poll1")
    LBL("L_poll1done")
    stamp(11, True)
    X1 = "quad_perm:[1,0,3,2] row_mask:0xf bank_mask:0xf"
    X2 = "quad_perm:[2,3,0,1] row_mask:0xf bank_mask:0xf"
    A(f"v_max_f32_dpp v{vT2}, v{vMS}, v{vMS} {X1}")
    A("s_nop 1")
    A(f"v_max_f32_dpp v{vT2}, v{vT2}, v{vT2} {X2}")
    A(f"v_sub_f32 v{vT2}, v{vMS}, v{vT2}")
    A(f"v_exp_f32 v{vT2}, v{vT2}")
    A("s_nop 0")
    A(f"v_mul_f32 v{vT3}, v{vT2}, v{vMS+1}")
    A("s_nop 1")
    A(f"v_add_f32_dpp v{vT3}, v{vT3}, v{vT3} {X1}")
    A("s_nop 1")
    A(f"v_add_f32_dpp v{vT3}, v{vT3}, v{vT3} {X2}")
    A(f"v_rcp_f32 v{vT3}, v{vT3}")
    A("s_nop 0")
    A(f"v_mul_f32 v{vT2}, v{vT2}, v{vT3}")
    for i in range(8): A(f"v_mul_f32 v{vF+i}, v{vT2}, v{vF+i}")
    for i in range(8): A(f"v_add_f32_dpp v{vF+i}, v{vF+i}, v{vF+i} {X1}")
    for i in range(8): A(f"v_add_f32_dpp v{vF+i}, v{vF+i}, v{vF+i} {X2}")
    for i in range(8): A(f"v_cvt_pk_bf16_f32 v{vF+i}, v{vF+i}, v{vF+i}")
    def op_a(n): onehot(Ab[n & 1], vF + (n & 7), n >> 3)
    op_a(0)
    for n in range(16):
        if n + 1 < 16: op_a(n + 1)
        A(f"v_mfma_f32_16x16x32_bf16 {r4(vACC)}, {r4(Ab[n&1])}, {r4(wslot(n))}, {'0' if n == 0 else r4(vACC)}")
    A(f"v_lshrrev_b32 v{vT0}, 5, v{vL}")
    A(f"v_mul_u32_u24 v{vT0}, {18*16}, v{vT0}")
    A(f"v_and_b32 v{vT1}, 15, v{vL}")
    A(f"v_lshl_add_u32 v{vT0}, v{vT1}, 5, v{vT0}")
    A(f"v_bfe_u32 v{vT1}, v{vL}, 4, 1")
    A(f"v_lshl_add_u32 v{vT0}, v{vT1}, 4, v{vT0}")
    A(f"s_and_b32 s3, s{sW}, 3")
    A(f"s_lshl_b32 s3, s3, 10")
    A(f"v_add_u32 v{vT0}, s3, v{vT0}")
    A("s_mov_b32 exec_lo, 0x01ff01ff")
    A("s_mov_b32 exec_hi, 0x01ff01ff")
    A(f"ds_write_b128 v{vT0}, {r4(vACC)} offset:{L_OUT}")
    A("s_waitcnt lgkmcnt(0)")
    A("s_barrier")
    stamp(12)
    A("s_branch L_end")

    LBL("L_br")
    A("s_barrier")
    stamp(12)
    A(f"s_lshl_b32 s{sT}, s{sP}, 3")
    A(f"s_add_u32 s{sT}, s{sT}, s{sJ}")
    A(f"s_mul_i32 s{sT}, s{sT}, {16*R_STR}")
    A(f"s_add_u32 s{sT}, s{sT}, {WS_R:#x}")
    A(f"s_cmp_eq_u32 s{sW}, 1")
    A("s_cbranch_scc1 L_final")
    A("s_mov_b32 exec_hi, 0xf")
    for w in range(4): A(f"ds_read_b128 {r4(vS+4*w)}, v{vVO} offset:{L_OUT+1024*w}")
    A(f"s_mul_i32 s3, s{sH}, {R_STR}")
    A(f"s_add_u32 s{sT}, s{sT}, s3")
    A("s_waitcnt lgkmcnt(2)")
    for i in range(4): A(f"v_add_f32 v{vS+i}, v{vS+i}, v{vS+4+i}")
    A("s_waitcnt lgkmcnt(0)")
    for i in range(4): A(f"v_add_f32 v{vS+8+i}, v{vS+8+i}, v{vS+12+i}")
    for i in range(4): A(f"v_add_f32 v{vS+i}, v{vS+i}, v{vS+8+i}")
    for i in range(4): A(f"v_min_u32 v{vS+i}, -2, v{vS+i}")
    A(f"buffer_store_dwordx4 {r4(vS)}, v{vVO}, {srd(sWS)}, s{sT} offen sc1")
    stamp(13)
    A("s_branch L_end")

    LBL("L_final")
    A(f"s_cmp_lt_u32 s{sH}, 9")
    A("s_cbranch_scc0 L_end")
    A(f"v_lshrrev_b32 v{vT0}, 2, v{vL}")
    A(f"v_mul_u32_u24 v{vT0}, {R_STR}, v{vT0}")
    A(f"v_and_b32 v{vT1}, 3, v{vL}")
    A(f"v_lshl_add_u32 v{vT0}, v{vT1}, 4, v{vT0}")
    A(f"s_lshl_b32 s3, s{sH}, 6")
    A(f"s_add_u32 s{sT}, s{sT}, s3")
    A(f"s_lshl_b32 s3, s{sH}, 2")
    A(f"v_add_u32 v{vT1}, s3, v{vT1}")
    A(f"v_cmp_lt_u32 vcc, 17, v{vT1}")
    A(f"v_lshlrev_b32 v{vT1}, 3, v{vT1}")
    A(f"v_add_u32 v{vT2}, {2304-144}, v{vT1}")
    A(f"s_mul_i32 s{sT2}, s{sP}, 1152")
    A(f"v_cndmask_b32 v{vT1}, v{vT1}, v{vT2}, vcc")
    A(f"s_mul_i32 s3, s{sJ}, 144")
    A(f"s_add_u32 s{sT2}, s{sT2}, s3")
    A(f"s_mov_b32 s{sCNT}, {SPIN}")
    LBL("L_poll2")
    A(f"buffer_load_dwordx4 {r4(vS)}, v{vT0}, {srd(sWS)}, s{sT} offen sc1")
    A("s_waitcnt vmcnt(0)")
    A(f"v_max3_u32 v{vT2}, v{vS}, v{vS+1}, v{vS+2}")
    A(f"v_max_u32 v{vT2}, v{vT2}, v{vS+3}")
    A(f"v_cmp_eq_u32 vcc, -1, v{vT2}")
    A("s_cbranch_vccz L_poll2done")
    A(f"s_sub_u32 s{sCNT}, s{sCNT}, 1")
    A("s_cbranch_scc1 L_end")
    A("s_sleep 1")
    A("s_branch L_poll2")
    LBL("L_poll2done")
    stamp(13)
    for rot in (4, 8):
        for i in range(4): A(f"v_add_f32_dpp v{vS+i}, v{vS+i}, v{vS+i} row_ror:{rot} row_mask:0xf bank_mask:0xf")
    for sw in ("v_permlane16_swap_b32", "v_permlane32_swap_b32"):
        for i in range(4): A(f"v_mov_b32 v{vS+4+i}, v{vS+i}")
        for i in range(4): A(f"{sw} v{vS+i}, v{vS+4+i}")
        for i in range(4): A(f"v_add_f32 v{vS+i}, v{vS+i}, v{vS+4+i}")
    A(f"v_cvt_pk_bf16_f32 v{vS+4}, v{vS}, v{vS+1}")
    A(f"v_cvt_pk_bf16_f32 v{vS+5}, v{vS+2}, v{vS+3}")
    A("s_mov_b64 exec, 0xf")
    A(f"buffer_store_dwordx2 {r2(vS+4)}, v{vT1}, {srd(sOUT)}, s{sT2} offen")
    A(f"s_or_b32 s3, s{sH}, s{sJ}")
    A("s_cbranch_scc1 L_end")
    A("s_mov_b64 exec, 1")
    A(f"v_mov_b32 v{vT0}, s{sTAG}")
    A(f"s_lshl_b32 s3, s{sP}, 8")
    A(f"v_mov_b32 v{vT1}, s3")
    A(f"buffer_store_dword v{vT0}, v{vT1}, {srd(sWS)}, 0 offen sc1")
    LBL("L_end")
    if opts.get('pad'):
        A("s_cmp_eq_u32 s63, 0")
        A("s_cbranch_scc1 L_paddone")
        LBL("L_pad")
        A("s_memrealtime s[6:7]")
        A("s_waitcnt lgkmcnt(0)")
        A("s_sub_u32 s3, s6, s60")
        A(f"s_cmp_gt_u32 s3, {int(opts['pad']*100)}")
        A("s_cbranch_scc1 L_paddone")
        A("s_sleep 1")
        A("s_branch L_pad")
        LBL("L_paddone")
    if stamps:
        A("s_cmp_ge_u32 s2, 256")
        A("s_cbranch_scc1 L_end2")
        stamp(14)
        A("s_getreg_b32 s94, hwreg(HW_REG_XCC_ID)")
        A("s_mov_b32 s95, 0")
        A("s_mov_b64 exec, 1")
        A(f"s_add_u32 s4, s{sWS}, 0x8000000"); A(f"s_addc_u32 s5, s{sWS+1}, 0")
        A(f"s_lshl_b32 s3, s2, 3"); A(f"s_add_u32 s3, s3, s{sW}"); A("s_lshl_b32 s3, s3, 7")
        A("v_mov_b32 v1, s3")
        A("s_waitcnt lgkmcnt(0) vmcnt(0)")
        for i in range(8):
            for k in range(4): A(f"v_mov_b32 v{4+k}, s{64+4*i+k}")
            A(f"global_store_dwordx4 v1, v[4:7], s[4:5] offset:{16*i}")
            A("s_waitcnt vmcnt(0)")
        if opts.get('dbg'):
            A("s_load_dwordx2 s[6:7], s[0:1], 88")
            A("v_mov_b32 v1, 0")
            A("s_waitcnt lgkmcnt(0)")
            for i in range(15):
                A(f"s_sub_u32 s3, s{64+2*i}, s64")
                A("s_cmp_lt_u32 s3, 100000")
                A(f"s_cselect_b32 s3, s{64+2*i}, 0")
                A("v_mov_b32 v2, s3")
                A(f"global_atomic_umax v1, v2, s[6:7] offset:{4*i}")
            A("s_not_b32 s3, s64")
            A("v_mov_b32 v2, s3")
            A("global_atomic_umax v1, v2, s[6:7] offset:60")
        LBL("L_end2")
    A("s_endpgm")
    L.append('.section .rodata,"a"'); L.append(".p2align 6"); L.append(f".amdhsa_kernel {NAME}_kernel")
    L.append("  .amdhsa_next_free_vgpr 256"); L.append(f"  .amdhsa_next_free_sgpr {96 if stamps else 64}"); L.append("  .amdhsa_accum_offset 256")
    L.append("  .amdhsa_group_segment_fixed_size 0"); L.append("  .amdhsa_kernarg_size 104"); L.append("  .amdhsa_user_sgpr_count 2")
    L.append("  .amdhsa_user_sgpr_kernarg_segment_ptr 1"); L.append("  .amdhsa_system_sgpr_workgroup_id_x 1"); L.append(".end_amdhsa_kernel")
    return "\n".join(L) + "\n"

def f2u(f):
    import struct
    return struct.unpack("<I", struct.pack("<f", f))[0]

if __name__ == "__main__":
    open("k1.s", "w").write(gen(False))
    open("k1_st.s", "w").write(gen(True))
    open("k1_st_b0.s", "w").write(gen(True, opts=dict(cbar=0)))
    open("k1_b0.s", "w").write(gen(False, opts=dict(cbar=0)))
    open("k1_st_c.s", "w").write(gen(True, opts=dict(prio=1)))
    open("k1_dbg.s", "w").write(gen(True, opts=dict(dbg=1)))
    for i in (1, 2, 5, 10, 12):
        open(f"../cdna_kernels/k1_ps{i}.s", "w").write(gen(False, opts=dict(pad=40, padst=i)))
    open(f"../cdna_kernels/k1_pad40.s", "w").write(gen(False, opts=dict(pad=40)))
    open("a_nocomm.s", "w").write(gen(True, opts=dict(nocomm=1)))
    open("a_nocomm_nowo.s", "w").write(gen(True, opts=dict(nocomm=1, nowo=1)))
    open("a_nocomm_nowld.s", "w").write(gen(True, opts=dict(nocomm=1, nowld=1)))
    open("a_wqonly.s", "w").write(gen(True, opts=dict(wqonly=1)))
    open("a_wqonly_nowld.s", "w").write(gen(True, opts=dict(wqonly=1, nowld=1)))
```
